```python
import torch

def _softmax(x, axis=-1):
    return torch.softmax(x, dim=axis)
def _gelu(x):
    return torch.nn.functional.gelu(x, approximate="tanh")
def _silu(x):
    return torch.nn.functional.silu(x)
def _sigmoid(x):
    return torch.sigmoid(x)
def _layernorm(x, axis=-1, eps=1e-5):
    m = x.mean(dim=axis, keepdim=True)
    v = x.var(dim=axis, keepdim=True, unbiased=False)
    return (x - m) / torch.sqrt(v + eps)
def _scatter_add(tgt, idx, src, axis=0):
    return tgt.clone().index_add_(axis, idx, src)
def _segment_sum(src, seg, n):
    out = torch.zeros((n,) + src.shape[1:], dtype=src.dtype)
    return out.index_add_(0, seg, src)
def _pad(x, pw):
    flat = tuple(v for pair in reversed(pw) for v in pair)
    return torch.nn.functional.pad(x, flat)

kernel_name = 'recurrent_scan__ssm_conv_s4__moe_arch_mod__prompt'

def setup_inputs():

    _w = (lambda a: (lambda t: t.to(torch.bfloat16) if t.is_floating_point() else t)(torch.as_tensor(a)))
    def _A_setup():
        B, L, D, N = 1, 2048, 448, 256
        A_re = -(lambda _x: torch.exp(torch.as_tensor(_x)))((lambda *s: torch.randn(*s, dtype=torch.bfloat16) * 6.4)(D, N))
        A_im = torch.pi * (lambda *s: torch.randn(*s, dtype=torch.bfloat16) * 0.05)(D, N)
        B_re = (lambda *s: torch.randn(*s, dtype=torch.bfloat16) * 0.1)(D, N)
        B_im = (lambda *s: torch.randn(*s, dtype=torch.bfloat16) * 0.1)(D, N)
        C_re = (lambda *s: torch.randn(*s, dtype=torch.bfloat16) * 0.1)(D, N)
        C_im = (lambda *s: torch.randn(*s, dtype=torch.bfloat16) * 0.1)(D, N)
        log_dt = (lambda *s: torch.randn(*s, dtype=torch.bfloat16) * 0.05)(D) * 0.5 - 4.0
        Dskip = (lambda *s: torch.randn(*s, dtype=torch.bfloat16) * 0.05)(D)
        return {
            "u": _w((lambda *s: torch.randn(*s, dtype=torch.bfloat16) * 0.05)(B, L, D)),
            "A_re": _w(A_re),
            "A_im": _w(A_im),
            "B_re": _w(B_re),
            "B_im": _w(B_im),
            "C_re": _w(C_re),
            "C_im": _w(C_im),
            "log_dt": _w(log_dt),
            "Dskip": _w(Dskip),
        }
    _A_in = _A_setup()

    def _B_setup():
        B, S, D, F, C = 1, 2048, 448, 1792, 1
        return {
            "x": _w((lambda *s: torch.randn(*s, dtype=torch.bfloat16) * 0.05)(B, S, D)),
            "w_r": _w((lambda *s: torch.randn(*s, dtype=torch.bfloat16) * 6.4)(D)),
            "w_gate": _w((lambda *s: torch.randn(*s, dtype=torch.bfloat16) * 0.1)(D, F)),
            "w_up": _w((lambda *s: torch.randn(*s, dtype=torch.bfloat16) * 0.1)(D, F)),
            "w_down": _w((lambda *s: torch.randn(*s, dtype=torch.bfloat16) * 0.1)(F, D)),
        }
    _B_in = _B_setup()

    return {
        "A_u": _A_in["u"],
        "A_A_re": _A_in["A_re"],
        "A_A_im": _A_in["A_im"],
        "A_B_re": _A_in["B_re"],
        "A_B_im": _A_in["B_im"],
        "A_C_re": _A_in["C_re"],
        "A_C_im": _A_in["C_im"],
        "A_log_dt": _A_in["log_dt"],
        "A_Dskip": _A_in["Dskip"],
        "B_x": _B_in["x"],
        "B_w_r": _B_in["w_r"],
        "B_w_gate": _B_in["w_gate"],
        "B_w_up": _B_in["w_up"],
        "B_w_down": _B_in["w_down"],
    }

def reference(A_u, A_A_re, A_A_im, A_B_re, A_B_im, A_C_re, A_C_im, A_log_dt, A_Dskip, B_x, B_w_r, B_w_gate, B_w_up, B_w_down):
    def _A_ref(u, A_re, A_im, B_re, B_im, C_re, C_im, log_dt, Dskip):
        Bsz, L, D = u.shape
        dt = torch.exp(log_dt)[:, None]
        A = A_re + 1j * A_im
        Bc = B_re + 1j * B_im
        Cc = C_re + 1j * C_im
        logdA = dt * A
        dB = dt * Bc
        l = (lambda x, dt: x.to(dt))(torch.arange(L), A_re.dtype)
        P = torch.exp(logdA[:, :, None] * l[None, None, :])
        K = torch.einsum("dn,dnl,dn->dl", Cc, P, dB).real
        L2 = 2 * L
        Kp = _pad(K, ((0, 0), (0, L)))
        up = (lambda x, *d: x.permute(*d))(u, 0, 2, 1)
        up = _pad(up, ((0, 0), (0, 0), (0, L)))
        Kf = (lambda x, axes=(-2,-1): torch.fft.rfft2(x.float(), dim=axes))(Kp[:, None, :], axes=(-2, -1))
        Uf = (lambda x, axes=(-2,-1): torch.fft.rfft2(x.float(), dim=axes))(up[:, :, None, :], axes=(-2, -1))
        Yf = Uf * Kf[None, :, :, :]
        y = (lambda x, s, axes=(-2,-1): torch.fft.irfft2(x, s=s, dim=axes).to(torch.bfloat16))(Yf, (1, L2), axes=(-2, -1))[:, :, 0, :L]
        y = (lambda x, *d: x.permute(*d))(y, 0, 2, 1) + u * Dskip[None, None, :]
        return y

    def _B_ref(x, w_r, w_gate, w_up, w_down):
        B, S, D = x.shape
        C = 1
        r = x @ w_r
        idx = torch.argsort(-r, axis=-1)[:, :C]
        idx_e = (lambda x, n, axis: torch.repeat_interleave(x, n, dim=axis))(idx.reshape(B, C, 1), D, axis=2)
        x_sel = (lambda x, i, axis: torch.take_along_dim(x, i, dim=axis))(x, idx_e, axis=1)
        g = _silu(x_sel @ w_gate)
        u = x_sel @ w_up
        y = (g * u) @ w_down
        r_sel = _sigmoid((lambda x, i, axis: torch.take_along_dim(x, i, dim=axis))(r, idx, axis=1))
        y = y * r_sel.reshape(B, C, 1)
        b_off = (torch.arange(B) * S).reshape(B, 1)
        flat_idx = (idx + b_off).reshape(B * C)
        zero = (x * 0.0).reshape(B * S, D)
        upd = _scatter_add(zero, flat_idx, y.reshape(B * C, D), axis=0)
        return x + upd.reshape(B, S, D)

    x = A_u
    xn = _layernorm(x, axis=-1)
    s = _A_ref(xn, A_A_re, A_A_im, A_B_re, A_B_im, A_C_re, A_C_im, A_log_dt, A_Dskip)
    g = _silu(_B_ref(xn, B_w_r, B_w_gate, B_w_up, B_w_down))
    return x + s * g
```

```python
import re

TRANS = ("v_exp_f32","v_log_f32","v_rcp_f32","v_rsq_f32","v_sqrt_f32","v_sin_f32","v_cos_f32","v_exp_f16","v_rcp_f16")
def _regs(tok):
    tok = tok.strip()
    tok = re.sub(r"^-|^\||\|$", "", tok)
    m = re.fullmatch(r"abs\((.*)\)", tok)
    if m: tok = m.group(1)
    m = re.fullmatch(r"([vsa])(\d+)", tok)
    if m: return {(m.group(1), int(m.group(2)))}
    m = re.fullmatch(r"([vsa])\[(\d+):(\d+)\]", tok)
    if m: return {(m.group(1), i) for i in range(int(m.group(2)), int(m.group(3))+1)}
    if tok in ("vcc","vcc_lo","vcc_hi"): return {("x","vcc")}
    if tok in ("exec","exec_lo","exec_hi"): return {("x","exec")}
    if tok == "m0": return {("x","m0")}
    return set()

class Ins:
    def __init__(self, text):
        self.text = text
        t = text.split(";")[0].strip()
        self.label = t.endswith(":")
        self.op = ""; self.w = set(); self.r = set(); self.kind = "other"; self.states = 1
        self.dpp = False; self.passes = 0; self.srcC = set(); self.ab = set(); self.data = set()
        if self.label or not t or t.startswith("."):
            self.states = 0; self.kind = "meta"; return
        parts = t.split(None, 1)
        op = parts[0]; self.op = op
        rest = parts[1] if len(parts) > 1 else ""
        ops = []; depth = 0; cur = ""
        for ch in rest:
            if ch in "[(": depth += 1
            if ch in "])": depth -= 1
            if ch == "," and depth == 0: ops.append(cur); cur = ""
            else: cur += ch
        if cur.strip(): ops.append(cur)
        if ops:
            last = ops[-1].strip().split()
            mods = " ".join(last[1:]); ops[-1] = last[0] if last else ""
        else: mods = ""
        ops = [o.strip() for o in ops]
        R = [_regs(o) for o in ops]
        base = re.sub(r"_(e32|e64|dpp|sdwa)$", "", op)
        self.base = base
        if op == "s_nop":
            self.states = int(ops[0], 0) + 1; return
        if op.startswith("v_mfma"):
            self.kind = "mfma"; self.passes = 8 if "32x32" in op else 4
            self.w = R[0]; self.ab = R[1] | R[2]; self.srcC = R[3]; self.r = self.ab | self.srcC
            return
        if op.startswith("v_"):
            self.kind = "valu"
            self.dpp = op.endswith("_dpp") or any(k in mods for k in ("quad_perm","row_shr","row_shl","row_ror","row_mirror","row_half_mirror","row_bcast","wave_"))
            if base.startswith("v_cmp"):
                self.w = R[0]; self.r = set().union(*R[1:])
            elif base in ("v_readlane_b32","v_readfirstlane_b32"):
                self.w = R[0]; self.r = set().union(*R[1:])
            elif base in ("v_add_co_u32","v_sub_co_u32","v_addc_co_u32","v_subb_co_u32","v_mad_u64_u32"):
                self.w = R[0] | R[1]; self.r = set().union(*R[2:])
            elif base.startswith("v_permlane") and "swap" in base:
                self.w = R[0] | R[1]; self.r = R[0] | R[1]
            else:
                self.w = R[0]; self.r = set().union(*R[1:]) if len(R) > 1 else set()
                if base in ("v_fmac_f32","v_writelane_b32","v_dot2c_f32_bf16","v_pk_fmac_f16") or self.dpp: self.r |= R[0]
            if base.startswith("v_dot") and len(R) > 3: self.srcC = R[3]; self.ab = R[1] | R[2]
            return
        if op.startswith("ds_"):
            self.kind = "ds"
            if "read" in op or "bpermute" in op or "swizzle" in op:
                self.w = R[0]; self.r = set().union(*R[1:]) if len(R) > 1 else set()
                if "d16" in op: self.r |= R[0]
            else:
                self.r = set().union(*R)
            if "addtid" in op: self.r |= {("x","m0")}
            return
        if op in ("buffer_wbl2", "buffer_inv"):
            self.kind = "vmem"; return
        if op.startswith("global_") or op.startswith("buffer_"):
            self.kind = "vmem"
            if "load" in op:
                self.w = R[0]; self.r = set().union(*R[1:])
            else:
                self.r = set().union(*R)
                if op.endswith("x4") or op.endswith("x3"): self.data = R[1] if op.startswith("global_") else R[0]
            return
        if op.startswith("s_"):
            self.kind = "salu"
            if op.startswith(("s_load","s_memtime","s_memrealtime","s_buffer_load")): self.kind = "smem"
            if op.startswith(("s_waitcnt","s_barrier","s_branch","s_cbranch","s_endpgm","s_sleep","s_setprio","s_cmp","s_bitcmp")):
                self.r = set().union(*R) if R else set()
            else:
                self.w = R[0] if R else set(); self.r = set().union(*R[1:]) if len(R) > 1 else set()
                if "saveexec" in op: self.w |= {("x","exec")}
            return
        raise ValueError("unknown instruction: " + text)

def V(s): return {x for x in s if x[0] in "va"}
def S(s): return {x for x in s if x[0] == "s" or x == ("x","vcc")}

def need(p, c):
    n = 0
    if p.kind == "valu":
        vw = V(p.w); sw = S(p.w)
        if c.kind == "mfma" and vw & c.r: n = max(n, 2)
        if c.kind == "valu":
            if p.base in TRANS and c.base not in TRANS and vw & c.r: n = max(n, 1)
            if c.dpp and vw & c.r: n = max(n, 2)
            if c.base.startswith("v_permlane") and vw & c.r: n = max(n, 2)
            if c.base in ("v_readlane_b32","v_readfirstlane_b32") and vw & c.r: n = max(n, 1)
            if sw & c.r:
                n = max(n, 4 if c.base in ("v_readlane_b32","v_writelane_b32") else 2)
        if p.base in TRANS and c.kind in ("ds","vmem") and vw & c.r: n = max(n, 1)
        if c.kind == "vmem" and sw & c.r: n = max(n, 5)
        if p.base.startswith("v_dot"):
            if vw & (c.r | c.w):
                if c.kind == "valu" and c.base == p.base and not (vw & c.ab): pass
                else: n = max(n, 3)
    if p.kind == "mfma":
        big = 12 if p.passes == 8 else 8
        if c.kind == "mfma":
            if p.w & c.ab: n = max(n, big)
            if p.w & c.srcC:
                if p.w == c.srcC and p.op == c.op: pass
                else: n = max(n, big-2)
            elif p.w & c.w: n = max(n, big)
        elif c.kind in ("valu","ds","vmem"):
            if p.w & (c.r | c.w): n = max(n, big)
            if c.kind == "valu" and p.srcC & c.w: n = max(n, big-5)
    if p.kind == "salu" and ("x","m0") in p.w and c.kind in ("ds","vmem") and ("x","m0") in c.r: n = max(n, 1)
    if p.kind == "vmem" and p.data and (p.data & c.w): n = max(n, 2)
    return n

class Asm:
    def __init__(self):
        self.lines = []
    def __call__(self, text):
        for l in text.split("\n"):
            l = l.strip()
            if l: self.lines.append(l)
    def finish(self, verbose=False):
        out = []; hists = [[]]; nops = 0; saved = {}
        def trim(h):
            d = 0; k = len(h)
            while k > 0 and d < 14:
                k -= 1; d += h[k].states
            return h[k:]
        for l in self.lines:
            if l.startswith(";") or l.startswith("."):
                out.append(l); continue
            ins = Ins(l)
            if ins.label:
                hists += [list(h) for h in saved.get(l.split(":")[0].strip(), [])]
                out.append(l); continue
            req = 0
            for hist in hists:
                dist = 0
                for p in reversed(hist):
                    req = max(req, need(p, ins) - dist)
                    dist += p.states
                    if dist >= 12: break
            if req > 0:
                nop = Ins(f"s_nop {req-1}"); out.append("    " + nop.text); nops += 1
                for h in hists: h.append(nop)
                if verbose: print("pad", req, "before", l)
            for h in hists: h.append(ins)
            out.append("    " + l)
            nh = []; seen = set()
            for h in hists:
                h = trim(h); key = tuple(id(x) for x in h)
                if key not in seen: seen.add(key); nh.append(h)
            hists = nh
            if ins.op.startswith("s_cbranch") or ins.op == "s_branch":
                tgt = l.split(";")[0].split()[1]
                saved.setdefault(tgt, []).extend(list(h) for h in hists)
            if ins.op in ("s_branch","s_endpgm"): hists = [[]]
        self.nops = nops
        return "\n".join(out) + "\n"

def merge(main, filler, every):
    out = []; f = list(filler); acc = 0.0
    for i, l in enumerate(main):
        out.append(l); acc += 1.0/every
        while acc >= 1.0 and f:
            out.append(f.pop(0)); acc -= 1.0
    return out + f
```

```python
import sys, struct
sys.path.insert(0, "gen")
from asmlib import Asm, merge

NAME = "recurrent_scan__ssm_conv_s4__moe_arch_mod__prompt"
KN = NAME + "_kernel"

def f2u(x): return struct.unpack("<I", struct.pack("<f", x))[0]
def fhex(x): return "0x%08x" % f2u(x)
def f32(x): return struct.unpack("<f", struct.pack("<f", x))[0]
import math
LOG2E = 1.4426950408889634; LOG2E_HI = f32(LOG2E); LOG2E_LO = LOG2E - LOG2E_HI
I2PI = 1.0/(2*math.pi); I2PI_HI = f32(I2PI); I2PI_LO = I2PI - I2PI_HI

X, ARE, AIM, BRE, BIM, CRE, CIM, LDT = ["s[%d:%d]" % (4+2*i, 5+2*i) for i in range(8)]
DSK, BX, WR, WG, WU, WD, OUT, DBG, WS = ["s[%d:%d]" % (20+2*i, 21+2*i) for i in range(9)]
TAG = "s38"; WID = "s39"
WS_ACK = 0x1000; WS_STATS = 0x4000; WS_FP = 0x10000; WS_DUMP = 0x100000
NLN = 128; FFN0 = 100; NACK = 240
POLL_MAX = 1 << 17
RS = 2064
BETA0 = 24*RS
L_DX = 56*RS
L_TAB = L_DX + 12288
T1E = 1088
T1O = 1088 + 1216 + 6
T3B = 2432 + 640
T4B = 2944 + 512
TABSZ = 3328
L_MISC = L_TAB + 4*TABSZ
LDS_SIZE = L_MISC + 256
XNSZ = 4608; L_XN = 0; L_Y = 4*XNSZ; YCH = 10240
assert T1E - 2*544 >= 0 and T1E + 28 + 4 <= T1O - 2*543 and T1O + 2*13 + 4 <= T3B - 640
assert T3B - 2*69 + 2 <= T4B - 512 and T4B - 2*99 + 2 <= TABSZ and (T1O-6) % 8 == 0 and T3B % 8 == 0 and L_TAB % 16 == 0

def vr(a, n): return "v[%d:%d]" % (a, a+n-1)

class Cfg:
    dump = None
    stamps = False
    wpf = "late"
    def __init__(self, **kw): self.__dict__.update(kw)

def stamp(a, cfg, k):
    if cfg.stamps: a(f"s_memrealtime s[{64+2*k}:{65+2*k}]")

def dpp_allreduce16(a, op, regs):
    for m in ("quad_perm:[1,0,3,2]", "quad_perm:[2,3,0,1]", "row_half_mirror", "row_mirror"):
        for r in regs: a(f"{op}_dpp v{r}, v{r}, v{r} {m} row_mask:0xf bank_mask:0xf")
def dpp_reduce64(a, op, regs):
    dpp_allreduce16(a, op, regs)
    for r in regs: a(f"{op}_dpp v{r}, v{r}, v{r} row_bcast:15 row_mask:0xa bank_mask:0xf")
    for r in regs: a(f"{op}_dpp v{r}, v{r}, v{r} row_bcast:31 row_mask:0xc bank_mask:0xf")

def make_tag(a):
    a(f"s_mul_i32 {TAG}, {TAG}, 1664525\ns_add_u32 {TAG}, {TAG}, 1013904223")

def code_prefetch(a, lab0, lab1, vtmp, vdst):
    a(f"""
    s_getpc_b64 s[46:47]
    L_pc_{lab0}:
    s_add_u32 s46, s46, {lab0}-L_pc_{lab0}
    s_addc_u32 s47, s47, 0
    v_lshlrev_b32 v{vtmp}, 7, v0
    v_cmp_gt_u32 vcc, {lab1}-{lab0}, v{vtmp}
    s_and_saveexec_b64 s[48:49], vcc
    s_cbranch_execz L_pfskip_{lab0}
    global_load_dword v{vdst}, v{vtmp}, s[46:47]
    L_pfskip_{lab0}:
    s_mov_b64 exec, s[48:49]
    """)

def gen_entry(a, cfg):
    stamp(a, cfg, 0)
    a(f"""
    s_load_dwordx16 s[4:19], s[0:1], 0
    s_load_dwordx16 s[20:35], s[0:1], 64
    s_load_dwordx2 s[36:37], s[0:1], 128
    v_lshrrev_b32 v2, 6, v0
    v_and_b32 v1, 63, v0
    v_readfirstlane_b32 {WID}, v2
    s_cmp_ge_u32 s2, {NLN}
    s_cbranch_scc1 L_notln
    """)

def wprefetch(a):
    a(f"""
    s_cmp_ge_u32 s2, 96
    s_cbranch_scc1 L_wpf_done
    s_and_b32 s44, s2, 7
    s_add_u32 s44, s44, {(8 - FFN0 % 8) % 8}
    s_and_b32 s44, s44, 7
    s_lshr_b32 s45, s2, 3
    s_mul_i32 s45, s45, 40
    v_mul_u32_u24 v50, 1639, v0
    v_lshrrev_b32 v50, 16, v50          ; tid/40 (0..12)
    v_mul_u32_u24 v51, 40, v50
    v_sub_u32 v51, v0, v51
    v_add_u32 v51, s45, v51
    v_min_u32 v51, 447, v51
    v_and_b32 v52, 3, v50
    v_lshl_add_u32 v52, v52, 3, s44
    v_min_u32 v52, 27, v52              ; block f
    v_lshrrev_b32 v50, 2, v50
    v_mul_u32_u24 v53, 3584, v51
    v_lshl_add_u32 v53, v52, 7, v53
    v_mul_u32_u24 v54, 448, v52
    v_add_lshl_u32 v54, v54, v51, 7
    """)
    for m, (base, off) in enumerate(((WG, 53), (WU, 53), (WD, 54))):
        a(f"""
        v_cmp_eq_u32 vcc, {m}, v50
        s_and_saveexec_b64 s[48:49], vcc
        s_cbranch_execz L_wpf_{m}
        global_load_dword v55, v{off}, {base}
        L_wpf_{m}:
        s_mov_b64 exec, s[48:49]
        """)
    a("L_wpf_done:")

def gen_ln(a, cfg):
    a(f"""
    v_and_b32 v5, 31, v0
    v_lshrrev_b32 v2, 5, v0
    s_lshl_b32 s40, s2, 4
    v_add_u32 v3, s40, v2              ; row
    v_mul_u32_u24 v4, 896, v3
    v_lshlrev_b32 v5, 4, v5
    v_add_u32 v6, v4, v5
    """)
    for r in range(8, 25): a(f"v_mov_b32 v{r}, 0")
    a(f"""
    s_mov_b32 s41, 0x3f803f80
    s_mov_b32 exec_lo, 0x0fffffff
    s_mov_b32 exec_hi, 0x0fffffff
    s_waitcnt lgkmcnt(0)
    global_load_dwordx4 v[8:11], v6, {X}
    global_load_dwordx4 v[12:15], v6, {X} offset:448
    global_load_ushort v24, v4, {X}
    global_load_dwordx4 v[16:19], v5, {WR}
    global_load_dwordx4 v[20:23], v5, {WR} offset:448
    s_mov_b64 exec, -1
    s_load_dword {TAG}, {WS}, 0
    """)
    code_prefetch(a, "L_ln_body", "L_notln", 26, 27)
    a(f"""
    L_ln_body:
    v_sub_u32 v7, 2047, v3
    v_lshlrev_b32 v2, 3, v2
    s_mov_b32 s42, {fhex(1.0/448)}
    s_mov_b32 s43, 0xffff0000
    s_waitcnt vmcnt(0)
    """)
    stamp(a, cfg, 1)
    S_, Q_, XW, SW = 30, 31, 32, 33
    for i in range(8):
        c = lambda r: "0" if i == 0 else f"v{r}"
        a(f"v_dot2_f32_bf16 v{S_}, v{8+i}, s41, {c(S_)}")
        a(f"v_dot2_f32_bf16 v{Q_}, v{8+i}, v{8+i}, {c(Q_)}")
        a(f"v_dot2_f32_bf16 v{XW}, v{8+i}, v{16+i}, {c(XW)}")
        a(f"v_dot2_f32_bf16 v{SW}, v{16+i}, s41, {c(SW)}")
    a(f"""
    v_lshlrev_b32 v24, 16, v24          ; pivot p
    v_mul_f32 v34, -16.0, v24
    v_add_f32 v34, v34, v{S_}           ; u = S - 16p
    v_add_f32 v35, v34, v{S_}
    v_fma_f32 v{XW}, -v24, v{SW}, v{XW}
    v_fma_f32 v{Q_}, -v24, v35, v{Q_}
    """.replace("-16.0", fhex(-16.0)))
    regs = [34, SW, XW, Q_]
    dpp_allreduce16(a, "v_add_f32", regs)
    for r in regs: a(f"v_add_f32_dpp v{r}, v{r}, v{r} row_bcast:15 row_mask:0xa bank_mask:0xf")
    a(f"""
    v_mul_f32 v34, s42, v34             ; mu
    v_mul_f32 v{Q_}, s42, v{Q_}
    v_add_f32 v36, v24, v34             ; mean
    v_fma_f32 v{Q_}, -v34, v34, v{Q_}
    v_max_f32 v{Q_}, 0, v{Q_}
    v_cvt_pk_bf16_f32 v{Q_}, 0, v{Q_}
    v_add_f32 v{Q_}, {fhex(1e-5)}, v{Q_}
    v_cvt_pk_bf16_f32 v{Q_}, 0, v{Q_}
    v_sqrt_f32 v{Q_}, v{Q_}
    v_cvt_pk_bf16_f32 v37, 0, v36       ; m as f32
    v_cvt_pk_bf16_f32 v40, v36, v{Q_}
    v_sub_f32 v37, v37, v24
    v_and_b32 v38, s43, v40
    v_rcp_f32 v38, v38
    v_fma_f32 v{XW}, -v37, v{SW}, v{XW}
    v_mul_f32 v{XW}, v{XW}, v38         ; r
    v_ashrrev_i32 v39, 31, v{XW}
    v_or_b32 v39, 0x80000000, v39
    v_xor_b32 v39, v39, v{XW}
    v_and_b32 v39, 0xfffff800, v39
    v_or_b32 v41, v39, v7               ; key
    s_mov_b32 exec_lo, 0x10000
    s_mov_b32 exec_hi, 0x10000
    ds_write_b64 v2, v[40:41]
    s_mov_b64 exec, -1
    s_waitcnt lgkmcnt(0)
    s_barrier
    """)
    make_tag(a)
    a(f"""
    s_cmp_lg_u32 {WID}, 0
    s_cbranch_scc1 L_ln_pubdone
    v_lshlrev_b32 v2, 4, v1
    s_mov_b64 exec, 0xff
    ds_read_b128 v[44:47], v2
    s_lshl_b32 s40, s2, 7
    s_add_u32 s40, s40, {WS_STATS}
    v_add_u32 v2, s40, v2
    s_lshl_b32 s40, s2, 2
    s_add_u32 s40, s40, {WS_ACK}
    v_mov_b32 v3, s40
    v_mov_b32 v4, {TAG}
    s_waitcnt lgkmcnt(0)
    v_max_u32 v42, v45, v47
    v_mov_b32 v40, v44
    v_mov_b32 v41, v46
    v_xor_b32 v43, v44, v46
    v_xor_b32 v43, v43, v42
    v_xor_b32 v43, {TAG}, v43
    global_store_dwordx4 v2, v[40:43], {WS} sc1
    s_mov_b64 exec, 1
    global_store_dword v3, v4, {WS} sc1
    s_mov_b64 exec, -1
    L_ln_pubdone:
    """)
    stamp(a, cfg, 2)
    a("s_barrier")
    if cfg.wpf == "late": wprefetch(a)
    a(f"""
    s_cmp_lt_u32 s2, {FFN0}
    s_cbranch_scc1 L_exit
    """)

def gen_ffn(a, cfg):
    XS = 1024; KEYS = 512; PART = XS + 8192; HS = PART + 4096
    W1 = 64
    W2 = 128
    P1 = 160
    P2 = 224
    a(f"""
    s_sub_u32 s40, s2, {FFN0}           ; f
    v_and_b32 v2, 7, v1                 ; cg
    v_bfe_u32 v3, v1, 3, 1              ; e
    v_lshrrev_b32 v4, 4, v1             ; g
    s_mov_b32 s50, 0x05040100
    s_mov_b32 s51, 0x07060302
    s_mov_b32 s43, 0xffff0000
    s_cmp_eq_u32 {WID}, 7
    s_cbranch_scc1 L_ffn_noload
    s_lshl_b32 s44, {WID}, 6
    v_lshl_add_u32 v5, v4, 3, s44
    v_add_u32 v5, 1, v5
    v_mul_u32_u24 v5, 3584, v5
    s_lshl_b32 s44, s40, 7
    v_lshl_add_u32 v6, v2, 4, s44
    v_add_u32 v5, v5, v6
    v_cmp_eq_u32 s[52:53], 1, v3
    v_mov_b32 v6, s26
    v_mov_b32 v7, s28
    v_cndmask_b32 v6, v6, v7, s[52:53]
    v_mov_b32 v7, s27
    v_mov_b32 v8, s29
    v_cndmask_b32 v7, v7, v8, s[52:53]
    v_add_co_u32 v6, vcc, v6, v5
    v_addc_co_u32 v7, vcc, 0, v7, vcc
    s_lshl_b32 s44, s40, 6
    s_add_u32 s44, s44, 4
    v_lshl_add_u32 v9, v3, 5, s44
    v_lshl_add_u32 v9, v4, 3, v9
    v_mul_u32_u24 v9, 896, v9
    s_lshl_b32 s44, {WID}, 7
    v_lshl_add_u32 v8, v2, 4, s44
    v_add_u32 v9, v9, v8
    """)
    cur = 1
    for ks in range(2):
        for i in range(8):
            row = 32*ks + i
            if abs(row - cur) > 1:
                d = (row + 1 - cur)*3584; cur = row + 1
                a(f"v_add_co_u32 v6, vcc, {d}, v6\nv_addc_co_u32 v7, vcc, 0, v7, vcc")
            a(f"global_load_dwordx4 {vr(W1+32*ks+4*i,4)}, v[6:7], off offset:{(row-cur)*3584}")
    for i in range(8):
        a(f"global_load_dwordx4 {vr(W2+4*i,4)}, v9, {WD} offset:{(i-4)*896}")
    stamp(a, cfg, 3)
    for blk, (src, dst) in enumerate(((W1, P1), (W1+32, P1+32), (W2, P2))):
        for ip in range(4):
            a(f"s_waitcnt vmcnt({24 - (8*blk + 2*ip + 2)})")
            for c in range(8):
                a(f"v_perm_b32 v{dst+4*c+ip}, v{src+4*(2*ip+1)+c//2}, v{src+4*(2*ip)+c//2}, s{50+(c&1)}")
    a("L_ffn_noload:")
    stamp(a, cfg, 4)
    a(f"""
    v_and_b32 v10, 3, v1                ; m&3
    s_lshl_b32 s44, {WID}, 7
    s_add_u32 s44, s44, {XS}
    v_lshl_add_u32 v11, v4, 4, s44      ; XS + 16*(8w+g)
    v_mov_b32 v12, {XS+896}
    v_bfe_u32 v13, v1, 2, 1
    v_lshl_add_u32 v13, v13, 2, v4
    s_lshl_b32 s45, {WID}, 8
    s_add_u32 s45, s45, {HS}
    v_lshl_add_u32 v13, v13, 4, s45
    s_add_u32 s44, s45, 128
    v_mov_b32 v14, s44
    """)
    for r in range(4):
        a(f"""
        v_cmp_eq_u32 s[52:53], {r}, v10
        v_cndmask_b32 v{16+r}, v12, v11, s[52:53]
        v_cndmask_b32 v{20+r}, v14, v13, s[52:53]
        """)
    a(f"""
    v_mov_b32 v24, 0
    v_lshl_add_u32 v25, v1, 2, s45
    ds_write_b32 v25, v24
    v_lshl_add_u32 v26, v1, 1, s45
    s_lshl_b32 s44, {WID}, 11
    s_add_u32 s44, s44, {WS_STATS}
    v_lshl_add_u32 v27, v1, 4, s44
    s_mov_b32 s54, 0
    L_ffn_poll:
    global_load_dwordx4 v[28:31], v27, {WS} sc1
    global_load_dwordx4 v[32:35], v27, {WS} offset:1024 sc1
    s_add_u32 s54, s54, 1
    s_waitcnt vmcnt(0)
    v_xor_b32 v36, v28, v29
    v_xor_b32 v37, v30, v31
    v_xor_b32 v38, v32, v33
    v_xor_b32 v39, v34, v35
    v_xor_b32 v36, v36, v37
    v_xor_b32 v38, v38, v39
    v_cmp_ne_u32 vcc, {TAG}, v36
    v_cmp_ne_u32 s[52:53], {TAG}, v38
    s_or_b64 vcc, vcc, s[52:53]
    s_cbranch_vccz L_ffn_got
    s_cmp_lt_u32 s54, {POLL_MAX}
    s_cbranch_scc1 L_ffn_poll
    L_ffn_got:
    """)
    stamp(a, cfg, 5)
    a("v_max_u32 v36, v30, v34")
    dpp_reduce64(a, "v_max_u32", [36])
    a(f"""
    v_readlane_b32 s55, v36, 63
    s_and_b32 s56, s55, 0x7ff
    s_sub_u32 s56, 2047, s56            ; token
    s_mul_i32 s57, s56, 896
    v_lshlrev_b32 v37, 4, v1
    v_add_u32 v38, s57, v37
    v_mov_b32 v40, 0
    v_mov_b32 v41, 0
    v_mov_b32 v42, 0
    v_mov_b32 v43, 0
    s_mov_b32 exec_hi, 0x00ffffff
    global_load_dwordx4 v[40:43], v38, {X}
    s_mov_b64 exec, -1
    s_bfe_u32 s57, s56, 0x60001
    s_nop 3
    v_readlane_b32 s58, v28, s57
    v_readlane_b32 s59, v29, s57
    v_readlane_b32 s60, v32, s57
    v_readlane_b32 s61, v33, s57
    s_bitcmp1_b32 s56, 0
    s_cselect_b32 s58, s59, s58
    s_cselect_b32 s60, s61, s60
    s_bitcmp1_b32 s56, 7
    s_cselect_b32 s58, s60, s58         ; stats
    s_lshl_b32 s59, s58, 16             ; m
    s_and_b32 s58, s58, 0xffff0000      ; den
    v_rcp_f32 v44, s58
    s_lshl_b32 s44, {WID}, 10
    s_add_u32 s44, s44, {XS}
    v_add_u32 v37, s44, v37
    s_lshl_b32 s44, {WID}, 2
    s_add_u32 s44, s44, {KEYS}
    v_mov_b32 v45, s44
    v_mov_b32 v46, s55
    v_cmp_gt_u32 s[52:53], 56, v1
    v_cndmask_b32 v44, 0, v44, s[52:53]
    ds_write_b32 v45, v46
    s_waitcnt vmcnt(0)
    """)
    for k in range(4):
        a(f"v_lshlrev_b32 v{48+2*k}, 16, v{40+k}\nv_and_b32 v{49+2*k}, s43, v{40+k}")
    for k in range(8): a(f"v_subrev_f32 v{48+k}, s59, v{48+k}")
    for k in range(8): a(f"v_cvt_pk_bf16_f32 v{48+k}, 0, v{48+k}")
    for k in range(8): a(f"v_mul_f32 v{48+k}, v{48+k}, v44")
    for k in range(4): a(f"v_cvt_pk_bf16_f32 v{40+k}, v{48+2*k}, v{49+2*k}")
    a(f"""
    ds_write_b128 v37, v[40:43]
    v_mov_b32 v45, {KEYS}
    s_waitcnt lgkmcnt(0)
    s_barrier
    ds_read_b128 v[28:31], v45
    ds_read_b128 v[32:35], v45 offset:16
    s_waitcnt lgkmcnt(0)
    v_max3_u32 v28, v28, v29, v30
    v_max3_u32 v32, v32, v33, v34
    v_max3_u32 v28, v28, v31, v35
    v_max_u32 v28, v28, v32
    v_not_b32 v28, v28
    v_bfe_u32 v28, v28, 8, 3
    v_lshlrev_b32 v28, 10, v28
    """)
    stamp(a, cfg, 6)
    a(f"s_cmp_eq_u32 {WID}, 7\ns_cbranch_scc1 L_ffn_s1done")
    AF = 64
    for r in range(4): a(f"v_add_u32 v{16+r}, v{16+r}, v28")
    for ks in range(2):
        for r in range(4): a(f"ds_read_b128 {vr(AF+16*ks+4*r,4)}, v{16+r} offset:{64*ks}")
    D0 = 96
    n = 0
    for ks in range(2):
        for r in range(4):
            a(f"s_waitcnt lgkmcnt({7-(4*ks+r)})")
            for q in range(2):
                c = 4*q + r
                cc = "0" if (ks == 0 and r == 0) else vr(D0+4*q, 4)
                a(f"v_mfma_f32_16x16x32_bf16 {vr(D0+4*q,4)}, {vr(AF+16*ks+4*r,4)}, {vr(P1+32*ks+4*c,4)}, {cc}")
    a(f"""
    s_lshl_b32 s44, {WID}, 9
    s_add_u32 s44, s44, {PART}
    v_lshl_add_u32 v29, v3, 8, s44
    v_lshl_add_u32 v29, v2, 5, v29
    s_mov_b64 exec, 0xffff
    ds_write_b128 v29, {vr(D0,4)}
    ds_write_b128 v29, {vr(D0+4,4)} offset:16
    s_mov_b64 exec, -1
    L_ffn_s1done:
    v_lshlrev_b32 v30, 2, v1
    v_add_u32 v30, {PART}, v30
    s_waitcnt lgkmcnt(0)
    s_barrier
    s_cmp_eq_u32 {WID}, 7
    s_cbranch_scc1 L_exit
    """)
    for w in range(7): a(f"ds_read2st64_b32 {vr(104+2*w,2)}, v30 offset0:{2*w} offset1:{2*w+1}")
    a(f"""
    s_mov_b32 s44, {fhex(-LOG2E)}
    s_waitcnt lgkmcnt(0)
    v_add_f32 v104, v104, v106
    v_add_f32 v108, v108, v110
    v_add_f32 v112, v112, v114
    v_add_f32 v104, v104, v116
    v_add_f32 v108, v108, v112
    v_add_f32 v105, v105, v107
    v_add_f32 v104, v104, v108
    v_cvt_pk_bf16_f32 v104, 0, v104
    v_add_f32 v109, v109, v111
    v_mul_f32 v106, s44, v104
    v_exp_f32 v106, v106
    v_add_f32 v113, v113, v115
    v_add_f32 v105, v105, v117
    v_add_f32 v106, 1.0, v106
    v_rcp_f32 v106, v106
    v_add_f32 v109, v109, v113
    v_add_f32 v105, v105, v109
    v_mul_f32 v104, v104, v106
    v_cvt_pk_bf16_f32 v105, 0, v105
    v_cvt_pk_bf16_f32 v104, 0, v104
    v_mul_f32 v104, v104, v105
    v_cvt_pk_bf16_f32 v104, v104, v104
    ds_write_b16 v26, v104
    """)
    for r in range(4): a(f"ds_read_b128 {vr(AF+4*r,4)}, v{20+r}")
    a(f"""
    s_lshl_b32 s44, s40, 1
    v_add_u32 v31, s44, v3
    v_mul_u32_u24 v31, 1792, v31
    s_lshl_b32 s44, {WID}, 8
    s_add_u32 s44, s44, {WS_FP}
    v_lshl_add_u32 v32, v2, 4, s44
    v_add_u32 v31, v31, v32
    s_lshr_b32 s57, {TAG}, 8
    s_lshr_b32 s58, {TAG}, 16
    s_lshr_b32 s59, {TAG}, 24
    v_mov_b32 v33, 0xff
    """)
    for r in range(4):
        a(f"s_waitcnt lgkmcnt({3-r})")
        for q in range(2):
            c = 4*q + r
            cc = "0" if r == 0 else vr(D0+4*q, 4)
            a(f"v_mfma_f32_16x16x32_bf16 {vr(D0+4*q,4)}, {vr(AF+4*r,4)}, {vr(P2+4*c,4)}, {cc}")
    tb = [TAG, "s57", "s58", "s59"]
    for q in range(2):
        for r in range(4): a(f"v_bfi_b32 v{D0+4*q+r}, v33, {tb[r]}, v{D0+4*q+r}")
    a(f"""
    s_mov_b32 exec_lo, 0xff0000ff
    s_mov_b32 exec_hi, 0
    global_store_dwordx4 v31, {vr(D0,4)}, {WS} sc1
    global_store_dwordx4 v31, {vr(D0+4,4)}, {WS} offset:128 sc1
    s_mov_b64 exec, -1
    """)
    stamp(a, cfg, 7)
    a("s_branch L_exit")

def gen_janitor(a, cfg):
    a(f"""
    L_janitor:
    s_cmp_lg_u32 s2, 135
    s_cbranch_scc1 L_exit0
    s_cmp_lg_u32 {WID}, 0
    s_cbranch_scc1 L_exit0
    s_waitcnt lgkmcnt(0)
    s_load_dword {TAG}, {WS}, 0
    v_min_u32 v2, {NACK//4 - 1}, v1
    v_lshlrev_b32 v2, 4, v2
    v_add_u32 v2, {WS_ACK}, v2
    s_mov_b32 s54, 0
    s_waitcnt lgkmcnt(0)
    """)
    make_tag(a)
    a(f"""
    L_jan_poll:
    s_sleep 16
    global_load_dwordx4 v[4:7], v2, {WS} sc1
    s_add_u32 s54, s54, 1
    s_waitcnt vmcnt(0)
    v_xor_b32 v4, {TAG}, v4
    v_xor_b32 v5, {TAG}, v5
    v_xor_b32 v6, {TAG}, v6
    v_xor_b32 v7, {TAG}, v7
    v_or3_b32 v4, v4, v5, v6
    v_or_b32 v4, v4, v7
    v_cmp_ne_u32 vcc, 0, v4
    s_cbranch_vccz L_jan_got
    s_cmp_lt_u32 s54, {POLL_MAX}
    s_cbranch_scc1 L_jan_poll
    L_jan_got:
    v_mov_b32 v2, 0
    v_mov_b32 v3, {TAG}
    s_mov_b64 exec, 1
    global_store_dword v2, v3, {WS} sc1
    L_exit0:
    s_endpgm
    """)

ALPHA_ROW = {0:0, 1:1, 2:2, 3:3, 4:4, 5:5, 6:6, 7:7, 256:9, 258:10, 260:11, 8:12, 262:14, 264:15,
             516:16, 520:17, 1032:18, 1288:19, 772:20, 776:21, 1544:22, 1800:23}
ALPHA_TREE = [(1,0,0),(2,0,1),(3,1,1),(4,0,2),(5,1,2),(6,2,2),(7,3,2),(8,0,3),
              (256,0,8),(258,2,8),(260,4,8),(262,6,8),(264,8,8),
              (516,4,9),(520,8,9),(772,260,9),(776,264,9),
              (1032,8,10),(1288,264,10),(1544,520,10),(1800,776,10)]
BOX = 232; FIX = 252
XRAW = 232; VCOL = 248

def cmul16(d, x, y, conj=False):
    if not conj:
        return [f"v_pk_mul_f16 v{d}, v{x}, v{y} op_sel:[0,0] op_sel_hi:[0,1]",
                f"v_pk_fma_f16 v{d}, v{x}, v{y}, v{d} op_sel:[1,1,0] op_sel_hi:[1,0,1] neg_lo:[1,0,0]"]
    return [f"v_pk_mul_f16 v{d}, v{x}, v{y} op_sel:[0,0] op_sel_hi:[0,1] neg_hi:[1,0]",
            f"v_pk_fma_f16 v{d}, v{x}, v{y}, v{d} op_sel:[1,1,0] op_sel_hi:[1,0,1]"]
def csq32(d, s):
    return [f"v_pk_mul_f32 {vr(d,2)}, {vr(s,2)}, {vr(s,2)} op_sel:[0,0] op_sel_hi:[0,1]",
            f"v_pk_fma_f32 {vr(d,2)}, {vr(s,2)}, {vr(s,2)}, {vr(d,2)} op_sel:[1,1,0] op_sel_hi:[1,0,1] neg_lo:[1,0,0]"]

def gen_kgen(a, cfg):
    P = 10
    CA8, CHI, CLO, DT = 16, 17, 18, 19
    VA, VB = 8, 9
    ACC = 32
    FB, FA = 48, 80
    E = [112, 124]
    R = 136
    L = 156
    T = [180, 196]
    Wr = [212, 214]
    TMP = 216
    lreg = {}
    for k, al in enumerate([0]+[t[0] for t in ALPHA_TREE]): lreg[al] = L + k
    def unpack(d, s, g):
        return f"v_lshlrev_b32 v{d}, 16, v{s}" if g == 0 else f"v_and_b32 v{d}, s43, v{s}"
    def direct3(g):
        t = T[g]
        return [unpack(t+3, P+1, g), unpack(t+0, P+0, g),
                f"v_mul_f32 v{t+1}, v{t+3}, v{CHI}", f"v_mul_f32 v{t+0}, v{t+0}, v{CA8}",
                f"v_fma_f32 v{t+2}, v{t+3}, v{CHI}, -v{t+1}", f"v_fract_f32 v{t+5}, v{t+1}",
                f"v_fma_f32 v{t+2}, v{t+3}, v{CLO}, v{t+2}", f"v_exp_f32 v{t+3}, v{t+0}",
                f"v_add_f32 v{t+5}, v{t+5}, v{t+2}",
                f"v_cos_f32 v{t+4}, v{t+5}", f"v_sin_f32 v{t+5}, v{t+5}",
                f"v_mul_f32 v{t+4}, v{t+4}, v{t+3}", f"v_mul_f32 v{t+5}, v{t+5}, v{t+3}",
                f"v_cvt_pk_f16_f32 v{E[g]+3}, v{t+4}, v{t+5}"]
    def sq(g, b, base):
        b0 = 3 if b > 3 else 0
        s = base + 2*((b-1-b0) & 1); d = base + 2*((b-b0) & 1)
        return csq32(d, s) + [f"v_cvt_pk_f16_f32 v{E[g]+b}, v{d}, v{d+1}"]
    def direct0(g):
        t = T[g]
        return [f"v_mul_f32 v{t+1}, 0.125, v{t+1}".replace("0.125", fhex(0.125)), f"v_mul_f32 v{t+0}, {fhex(0.125)}, v{t+0}",
                f"v_fract_f32 v{t+9}, v{t+1}", f"v_exp_f32 v{t+2}, v{t+0}",
                f"v_cos_f32 v{t+8}, v{t+9}", f"v_sin_f32 v{t+9}, v{t+9}",
                f"v_mul_f32 v{t+8}, v{t+8}, v{t+2}", f"v_mul_f32 v{t+9}, v{t+9}, v{t+2}",
                f"v_cvt_pk_f16_f32 v{E[g]+0}, v{t+8}, v{t+9}"] + sq(g, 1, t+8) + sq(g, 2, t+8)
    def wsetup(g):
        t = TMP
        return [unpack(t, P+2, g), unpack(t+1, P+3, g), unpack(t+2, P+4, g), unpack(t+3, P+5, g),
                f"v_mul_f32 v{Wr[g]}, v{t+2}, v{t}", f"v_mul_f32 v{Wr[g]+1}, v{t+2}, v{t+1}",
                f"v_fma_f32 v{Wr[g]}, -v{t+3}, v{t+1}, v{Wr[g]}", f"v_fma_f32 v{Wr[g]+1}, -v{t+3}, v{t}, -v{Wr[g]+1}"]
    def wscale():
        t = TMP+4
        o = [f"v_max3_f32 v{t}, |v{Wr[0]}|, |v{Wr[0]+1}|, |v{Wr[1]}|", f"v_max_f32 v{t}, v{t}, |v{Wr[1]+1}|"]
        for m in ("quad_perm:[1,0,3,2] row_mask:0xf", "quad_perm:[2,3,0,1] row_mask:0xf", "row_half_mirror row_mask:0xf", "row_mirror row_mask:0xf",
                  "row_bcast:15 row_mask:0xa", "row_bcast:31 row_mask:0xc"):
            o.append(f"v_max_u32_dpp v{t}, v{t}, v{t} {m} bank_mask:0xf")
        o += [f"v_readlane_b32 s50, v{t}, 63",
              "s_lshr_b32 s50, s50, 23\ns_sub_u32 s50, 267, s50\ns_min_u32 s50, s50, 253\ns_sub_u32 s51, 254, s50\ns_lshl_b32 s50, s50, 23\ns_lshl_b32 s51, s51, 23"]
        for g in range(2): o += [f"v_mul_f32 v{Wr[g]}, s50, v{Wr[g]}", f"v_mul_f32 v{Wr[g]+1}, s50, v{Wr[g]+1}"]
        o += [f"v_mul_f32 v{DT}, s51, v{DT}"]
        return o
    def beta(g, inline_sq):
        o = ["s_mov_b32 m0, s53"]
        pend = []
        def wr(reg, j): return f"ds_write_addtid_b32 v{reg} offset:{j*RS}"
        for b in range(5):
            if inline_sq and b > 0: o += sq(g, 3+b, T[g]+4)
            e = E[g]+3+b
            o.append(wr(e, 1 << b))
            for j in range(1, 1 << b):
                src = (E[g]+3+j.bit_length()-1) if (j & (j-1)) == 0 else R+j
                jj = (1 << b) + j
                d = R+jj if jj < 16 else R+16+(jj & 3)
                o += cmul16(d, src, e)
                if pend: o.append(pend.pop())
                pend.append(wr(d, jj))
        return o + pend
    def alpha(g):
        o = [f"v_cvt_pk_f16_f32 v{lreg[0]}, v{Wr[g]}, v{Wr[g]+1}", "s_mov_b32 m0, s52"]
        pend = [f"ds_write_addtid_b32 v{lreg[0]} offset:0"]
        for (n, p, b) in ALPHA_TREE:
            o += cmul16(lreg[n], lreg[p], E[g]+b, conj=True)
            o.append(pend.pop())
            pend.append(f"ds_write_addtid_b32 v{lreg[n]} offset:{ALPHA_ROW[n]*RS}")
        return o + pend
    rdB = [f"ds_read_b128 {vr(FB+4*k,4)}, v{VB} offset:{32*k}" for k in range(8)]
    rdA = [f"ds_read_b128 {vr(FA+4*k,4)}, v{VA} offset:{32*k}" for k in range(8)]
    def mf(k, first): return f"v_mfma_f32_32x32x16_f16 {vr(ACC,16)}, {vr(FA+4*k,4)}, {vr(FB+4*k,4)}, {'0' if first else vr(ACC,16)}"
    def colload(i):
        return [f"s_cmp_lt_u32 {WID}, 4\ns_cbranch_scc1 L_nocol{i}\n"
                f"global_load_dwordx2 {vr(XRAW+4*i,2)}, v{VCOL+i}, {X}\nglobal_load_dwordx2 {vr(XRAW+4*i+2,2)}, v{VCOL+i}, {X} offset:896\nL_nocol{i}:"]
    seq = []
    seq += colload(0) + direct3(0)
    f1 = wsetup(0) + wsetup(1) + wscale() + direct0(0)
    b0 = beta(0, True)
    cut = max(i for i, l in enumerate(b0) if l.startswith(f"v_cvt_pk_f16_f32 v{E[0]+7},")) + 1
    nf = len(f1)*cut//len(b0)
    seq += merge(b0[:cut], f1[:nf], cut/max(nf,1))
    f1b = f1[nf:] + sq(0,8,T[0]+4) + sq(0,9,T[0]+4) + sq(0,10,T[0]+4)
    seq += merge(b0[cut:], f1b, (len(b0)-cut)/len(f1b))
    seq += colload(1)
    f2 = rdB + direct3(1) + sq(1,4,T[1]+4) + sq(1,5,T[1]+4) + sq(1,6,T[1]+4) + sq(1,7,T[1]+4)
    a0 = alpha(0)
    seq += merge(a0, f2, len(a0)/len(f2))
    seq += colload(2)
    seq += rdA
    b1 = beta(1, False)
    f3 = sq(1,8,T[1]+4) + sq(1,9,T[1]+4) + sq(1,10,T[1]+4) + direct0(1)
    head = 30
    seq += merge(b1[:head], f3[:10], 3)
    nds = sum(1 for l in b1[:head] if l.startswith("ds_"))
    seq += [f"s_waitcnt lgkmcnt({min(nds,15)})"]
    rest = merge(b1[head:], f3[10:], (len(b1)-head)/len(f3[10:]))
    seq += merge(rest, [mf(k, k == 0) for k in range(8)], len(rest)/8.5)
    seq += colload(3)
    a1 = alpha(1)
    seq += merge(a1, rdB, 4)
    seq += rdA
    for l in seq: a(l)
    a(f"s_cmp_lt_u32 {WID}, 4\ns_cbranch_scc1 L_nopoll0")
    stats_loads(a)
    a("L_nopoll0:")
    for k in range(8):
        a(f"s_waitcnt lgkmcnt({7-k})")
        a(mf(k, False))
    return ACC, DT

GR = 200
def stats_loads(a):
    for i in range(4):
        a(f"global_load_dwordx4 {vr(GR+4*i,4)}, v{252+i//2}, {WS} offset:{-4096 if i%2==0 else 0} sc1")

def boxmask(a, dst, lo, width, val, tmp):
    a(f"""
    v_add_u32 v{tmp}, {lo}, v3
    v_lshlrev_b32 v{tmp}, v{tmp}, v{tmp+3 + 0}
    """.replace(f"v{tmp+3 + 0}", f"v{tmp+3}"))
    a(f"v_lshrrev_b32 v{tmp}, v4, v{tmp}")
    for p in range(4):
        a(f"""
        v_bfe_u32 v{tmp+1}, v{tmp}, {2*p}, 1
        v_bfe_u32 v{tmp+2}, v{tmp}, {2*p+1}, 1
        v_lshl_or_b32 v{tmp+1}, v{tmp+2}, 16, v{tmp+1}
        v_mul_lo_u32 v{dst+p}, v{tmp+1}, s44
        """)

def gen_conv(a, cfg):
    a(f"""
    L_notln:
    s_cmp_ge_u32 s2, 256
    s_cbranch_scc1 L_exit0
    s_and_b32 s40, s2, 7
    s_cmp_eq_u32 s40, 7
    s_cbranch_scc1 L_janitor
    s_lshr_b32 s41, s2, 3
    s_sub_u32 s41, s41, 16              ; slot 0..15
    s_lshl_b32 s42, s40, 4
    s_add_u32 s42, s42, s41             ; cg
    s_and_b32 s45, {WID}, 3
    s_lshr_b32 s55, {WID}, 2
    s_lshl_b32 s44, s42, 2
    s_add_u32 s44, s44, s45
    s_lshl_b32 s44, s44, 9
    s_lshl_b32 s56, s55, 8
    s_add_u32 s44, s44, s56
    v_lshl_add_u32 v2, v1, 2, s44
    s_lshl_b32 s44, s41, 7
    v_lshrrev_b32 v3, 2, v0
    v_add_u32 v3, s44, v3
    v_mul_u32_u24 v3, 896, v3
    s_lshl_b32 s44, s40, 7
    v_add_u32 v3, s44, v3
    s_lshl_b32 s58, s42, 3              ; 8*cg
    s_waitcnt lgkmcnt(0)
    global_load_dword v10, v2, {ARE}
    global_load_dword v11, v2, {AIM}
    s_load_dwordx2 s[60:61], {LDT}, s58
    s_load_dwordx2 s[62:63], {DSK}, s58
    s_load_dword {TAG}, {WS}, 0
    global_load_dword v12, v2, {BRE}
    global_load_dword v13, v2, {BIM}
    global_load_dword v14, v2, {CRE}
    global_load_dword v15, v2, {CIM}
    global_load_dword v5, v3, {X}
    """)
    code_prefetch(a, "L_conv_body", "L_code_end", 6, 7)
    a(f"""
    L_conv_body:
    s_mov_b32 s43, 0xffff0000
    s_lshl_b32 s52, {WID}, 8            ; m0 for alpha rows
    s_add_u32 s53, s52, {BETA0}         ; m0 for beta rows
    ; zero the table area (4*TABSZ bytes) and write beta row 0 = 1+0i
    v_mov_b32 v20, 0
    v_mov_b32 v21, 0
    v_mov_b32 v22, 0
    v_mov_b32 v23, 0
    v_lshlrev_b32 v24, 4, v0
    v_add_u32 v24, {L_TAB}, v24
    ds_write_b128 v24, v[20:23]
    v_add_u32 v24, {4*TABSZ-8192}, v24
    ds_write_b128 v24, v[20:23]
    v_mov_b32 v25, 0x3c00
    s_mov_b32 m0, s53
    ds_write_addtid_b32 v25 offset:0
    ; fragment read addresses
    v_and_b32 v8, 31, v1
    v_mov_b32 v9, v8
    v_writelane_b32 v8, 4, 8
    v_writelane_b32 v8, 4, 40
    v_writelane_b32 v8, 11, 13
    v_writelane_b32 v8, 11, 45
    v_writelane_b32 v8, 13, 27
    v_writelane_b32 v8, 13, 59
    v_lshrrev_b32 v26, 5, v1
    v_lshl_add_u32 v26, v26, 4, s52
    v_mad_u32_u24 v8, v8, v27, v26
    v_mad_u32_u24 v9, v9, v27, v26
    v_add_u32 v9, {BETA0}, v9
    v_and_b32 v3, 15, v1
    v_lshrrev_b32 v4, 4, v1
    v_lshlrev_b32 v4, 3, v4             ; 8g
    s_cmp_lt_u32 {WID}, 4
    s_cbranch_scc0 L_hsetup
    """.replace("v_lshrrev_b32 v26, 5, v1", f"v_mov_b32 v27, {RS}\nv_lshrrev_b32 v26, 5, v1"))
    boxes = [(4-1, 3), (8-2, 5), (12-1, 3), (8-4, 9), (8-3, 7)]
    a("s_mov_b32 s44, 0x3f80")
    for k, (lo, w) in enumerate(boxes):
        a(f"v_mov_b32 v31, {(1<<w)-1}")
        boxmask(a, BOX+4*k, lo, w, 0x3f80, 28)
    a("s_mov_b32 s44, 0xffff\nv_mov_b32 v31, 3")
    boxmask(a, FIX, 12, 2, 0xffff, 28)
    a(f"""
    s_branch L_setupdone
    L_hsetup:
    s_lshl_b32 s44, s45, 6
    v_add_u32 v26, s44, v1              ; 64h + lane
    v_mul_u32_u24 v{VCOL}, 1792, v26
    v_add_u32 v{VCOL}, s58, v{VCOL}
    v_add_u32 v{VCOL+1}, {512*896}, v{VCOL}
    v_add_u32 v{VCOL+2}, {1024*896}, v{VCOL}
    v_add_u32 v{VCOL+3}, {1536*896}, v{VCOL}
    v_lshlrev_b32 v252, 4, v26
    v_add_u32 v252, {WS_STATS+4096}, v252
    v_add_u32 v253, 8192, v252
    v_lshlrev_b32 v254, 1, v26
    L_setupdone:
    s_waitcnt lgkmcnt(0)
    """)
    make_tag(a)
    a(f"""
    s_lshl_b32 s44, s45, 4
    s_lshr_b64 s[60:61], s[60:61], s44
    s_lshl_b32 s60, s60, 16
    v_mov_b32 v20, {fhex(LOG2E_HI)}
    v_mul_f32 v21, s60, v20
    v_fma_f32 v22, s60, v20, -v21
    v_mov_b32 v23, {fhex(LOG2E_LO)}
    v_fma_f32 v22, s60, v23, v22
    v_exp_f32 v21, v21
    v_mul_f32 v22, {fhex(math.log(2.0))}, v22
    v_fma_f32 v21, v21, v22, v21
    v_cvt_pk_bf16_f32 v19, 0, v21       ; dt
    v_mul_f32 v16, {fhex(8*LOG2E_HI)}, v19
    v_mov_b32 v20, {fhex(8*I2PI_HI)}
    v_mul_f32 v17, v19, v20
    v_fma_f32 v18, v19, v20, -v17
    v_mov_b32 v23, {fhex(8*I2PI_LO)}
    v_fma_f32 v18, v19, v23, v18
    ; ack
    s_cmp_lg_u32 {WID}, 0
    s_cbranch_scc1 L_noack
    s_lshl_b32 s44, s42, 2
    s_add_u32 s44, s44, {WS_ACK + 4*NLN}
    v_mov_b32 v20, s44
    v_mov_b32 v21, {TAG}
    s_waitcnt vmcnt(0)
    s_mov_b64 exec, 1
    global_store_dword v20, v21, {WS} sc1
    s_mov_b64 exec, -1
    s_branch L_kgen
    L_noack:
    s_waitcnt vmcnt(0)
    L_kgen:
    """)
    stamp(a, cfg, 1)
    ACC, DT = gen_kgen(a, cfg)
    a(f"""
    s_mul_i32 s44, s45, 3072
    s_add_u32 s44, s44, {L_DX}
    v_lshl_add_u32 v20, v1, 4, s44
    s_cmp_lt_u32 {WID}, 4
    s_cbranch_scc0 L_helper
    """)
    gen_mfma_wave(a, cfg, ACC, DT)
    gen_helper(a, cfg, ACC, DT)

AF = 64; T3 = 132; T4 = 156; Z4 = 172; Z8 = 204; ACCS = 8; ZT = 24; ZT8 = 220; RING = 40; NRING = 6

def gen_mfma_wave(a, cfg, ACC, DT):
    K = 48
    a(f"""
    s_mul_i32 s46, s45, {TABSZ}
    s_add_u32 s46, s46, {L_TAB}
    v_and_b32 v21, 31, v1               ; j
    v_lshrrev_b32 v22, 5, v1            ; h
    v_lshl_add_u32 v23, v21, 1, v22     ; 2j+h
    v_lshlrev_b32 v23, 3, v23
    s_add_u32 s44, s46, {T1E-8-512}
    v_sub_u32 v24, s44, v23
    s_add_u32 s44, s46, {T3B - 2*130}
    v_lshlrev_b32 v25, 2, v1            ; 4*(32h+j)
    v_sub_u32 v25, s44, v25
    v_lshl_add_u32 v26, v22, 6, v21     ; 64h+j
    v_lshlrev_b32 v26, 1, v26
    s_add_u32 s44, s46, {T4B - 2*161}
    v_sub_u32 v26, s44, v26             ; m8 = 161+64h+j (k11); k10 at +64
    v_mov_b32 v27, s46
    v_sub_u32 v28, v4, v3               ; 8g - q
    v_lshlrev_b32 v28, 1, v28
    v_and_b32 v29, 1, v3
    v_mul_u32_u24 v29, {T1O-T1E}, v29
    s_add_u32 s44, s46, {T1E - 32 - 1024}
    v_add3_u32 v28, v28, v29, s44
    v_add_u32 v29, 512, v28
    v_lshlrev_b32 v30, 2, v4
    v_lshlrev_b32 v31, 3, v3
    v_sub_u32 v30, v30, v31             ; 32g - 8a
    s_add_u32 s44, s46, {T3B - 8 - 512}
    v_add_u32 v30, s44, v30             ; T3(s,e) at +128*(4-s)+16e
    v_lshlrev_b32 v31, 1, v3
    v_sub_u32 v31, v4, v31
    v_lshlrev_b32 v31, 1, v31           ; 16g - 4a
    s_add_u32 s44, s46, {T4B - 4 - 448}
    v_add_u32 v31, s44, v31             ; T4(s) at +64*(7-s)
    s_barrier
    """)
    stamp(a, cfg, 2)
    for k in range(3): a(f"ds_read_b128 {vr(K+4*k,4)}, v20 offset:{1024*k}")
    a(f"""
    s_mul_i32 s44, s45, {XNSZ}
    v_lshlrev_b32 v2, 5, v3
    v_lshl_add_u32 v2, v4, 1, v2
    v_add_u32 v2, s44, v2
    s_mul_i32 s44, s45, {YCH}
    s_add_u32 s44, s44, {L_Y}
    v_mul_u32_u24 v5, 40, v4
    v_lshl_add_u32 v5, v3, 4, v5
    v_add_u32 v5, s44, v5
    """)
    for k in range(12):
        if k % 4 == 0: a(f"s_waitcnt lgkmcnt({2-k//4})")
        a(f"v_fma_f32 v{K+k}, v{ACC+k}, v{DT}, v{K+k}")
    pk = 8
    def cv(d, lo, hi): a(f"v_cvt_pk_bf16_f32 v{d}, v{K+lo}, v{K+hi}")
    cv(pk+0, 4, 3); cv(pk+1, 2, 1)
    cv(pk+2, 3, 2); cv(pk+3, 1, 0)
    a(f"ds_write_b64 v24, {vr(pk,2)} offset:512")
    cv(pk+4, 7, 7); cv(pk+5, 6, 5)
    a(f"ds_write_b64 v24, {vr(pk+2,2)} offset:{512 + T1O-6 - (T1E-8)}")
    cv(pk+6, 7, 6); cv(pk+7, 5, 5)
    a(f"ds_write_b64 v24, {vr(pk+4,2)}")
    cv(pk+8, 9, 8); cv(pk+9, 10, 11)
    a(f"""
    ds_write_b64 v24, {vr(pk+6,2)} offset:{T1O-6 - (T1E-8)}
    ds_write_b32 v25, v{pk+8}
    ds_write_b16 v26, v{pk+9} offset:64
    ds_write_b16_d16_hi v26, v{pk+9}
    s_mov_b64 exec, 1
    ds_write_b16_d16_hi v27, v{pk+3} offset:{T1E}
    s_mov_b32 exec_lo, 0
    s_mov_b32 exec_hi, 0x80000000
    ds_write_b32 v27, v{pk+4} offset:{T1E-1028}
    ds_write_b32 v27, v{pk+4} offset:{T1O-1026}
    ds_write_b16 v27, v{pk+4} offset:{T1O-1028}
    s_mov_b64 exec, -1
    ds_read_u16 v6, v27 offset:{T3B-512}
    """)
    order = [7, 15, 6, 14, 5, 13, 4, 12, 3, 11, 2, 10, 1, 9, 0, 8, 16]
    for n in order:
        off = 8*(32-2*n); base = 28
        if off >= 128: off -= 128; base = 29
        a(f"ds_read2_b32 {vr(AF+4*n,2)}, v{base} offset0:{off} offset1:{off+1}")
        a(f"ds_read2_b32 {vr(AF+4*n+2,2)}, v{base} offset0:{off+2} offset1:{off+3}")
    for s in (2,3,4):
        for e in range(2):
            d = T3 + 8*(s-2) + 4*e; off = 128*(4-s) + 16*e
            a(f"ds_read_b64 {vr(d,2)}, v30 offset:{off}\nds_read_b64 {vr(d+2,2)}, v30 offset:{off+8}")
    for s in range(4, 8):
        d = T4 + 4*(s-4); off = 16*(7-s)
        a(f"ds_read2_b32 {vr(d,2)}, v31 offset0:{off} offset1:{off+1}\nds_read2_b32 {vr(d+2,2)}, v31 offset0:{off+2} offset1:{off+3}")
    a("s_waitcnt lgkmcnt(0)")
    a("v_lshl_or_b32 v6, v6, 16, v6")
    for p in range(4): a(f"v_and_b32 v{FIX+p}, v6, v{FIX+p}")
    if cfg.dump == "ktab":
        dump_lds(a, "s46", TABSZ, "ktab")
    a("s_setprio 1")
    stamp(a, cfg, 3)
    a("s_barrier")
    stamp(a, cfg, 4)
    gen_conv_stream(a, cfg)
    stamp(a, cfg, 5)
    gen_final_row(a, cfg)

def gen_conv_stream(a, cfg):
    def acc(j): return ACCS + 4*(j % 4)
    def Afr(d): return AF + 4*(d//2)
    reads = []
    ops = []
    started = set()
    def mm(j, s0, s1, rd=None):
        c = vr(acc(j),4) if j in started else "0"; started.add(j)
        ops.append(("m", (lambda rr, j=j, s0=s0, s1=s1, c=c: f"v_mfma_f32_16x16x32_bf16 {vr(acc(j),4)}, {vr(s0 if s0 is not None else rr,4)}, {vr(s1 if s1 is not None else rr,4)}, {c}"), rd))
    def zm(d, box, rd):
        ops.append(("m", (lambda rr, d=d, box=box: f"v_mfma_f32_16x16x32_bf16 {vr(d,4)}, {vr(rr,4)}, {vr(BOX+4*box,4)}, 0"), rd))
    def rd(off, stage): reads.append((off, stage)); return len(reads)-1
    last = None
    for t in range(9):
        pendv = []
        if t >= 1:
            tp = t-1
            if tp <= 5:
                x8 = rd(480 + 512*tp - 16, tp)
                zm(ZT+4, 0, last); zm(ZT+8, 1, last); zm(ZT+12, 2, last)
                if tp <= 3: zm(ZT8+4, 4, last)
                ops.append(("free", last))
                zm(ZT+0, 1, x8)
                if tp <= 3: zm(ZT8, 3, x8)
                ops.append(("free", x8))
                z = Z4 + 8*(tp % 4)
                for e in range(2):
                    for rr_ in range(2):
                        r = 2*e + rr_
                        pendv.append(f"v_cvt_pk_bf16_f32 v{z+4*e+2*rr_}, v{ZT+r}, v{ZT+4+r}")
                        pendv.append(f"v_cvt_pk_bf16_f32 v{z+4*e+2*rr_+1}, v{ZT+8+r}, v{ZT+12+r}")
                if tp <= 3:
                    for r in range(4): pendv.append(f"v_cvt_pk_bf16_f32 v{Z8+4*tp+r}, v{ZT8+r}, v{ZT8+4+r}")
            else:
                ops.append(("free", last))
        body_start = len(ops)
        if t <= 7:
            for s in (4, 3, 2):
                if t - s >= 0:
                    for e in range(2): mm(t, Z4 + 8*((t-s) % 4) + 4*e, T3 + 8*(s-2) + 4*e)
            for s in range(4, 8):
                if t - s >= 0: mm(t, Z8 + 4*(t-s), T4 + 4*(s-4))
            if t >= 4:
                fx = rd(480 + 512*(t-4), t-4); mm(t, FIX, None, fx); ops.append(("free", fx))
            for sg in range(16*(t-1)+2, 16*t+1, 2):
                r = rd(480 + 32*sg, t)
                mm(t, Afr(16*t - sg), None, r)
                if t+1 <= 7: mm(t+1, Afr(16*(t+1) - sg), None, r)
                if sg == 16*t:
                    if t+2 <= 7: mm(t+2, Afr(32), None, r)
                    last = r
                else: ops.append(("free", r))
        body = ops[body_start:]; del ops[body_start:]
        nz = 0 if t == 0 else (6 if t-1 <= 3 else 4 if t-1 <= 5 else 0)
        out = []; cnt = 0; ydone = (t == 0); bdone = (t == 0); ypos = max(0, 6 - nz)
        for o in body:
            if not ydone and cnt >= ypos: out.append(("y", t-1)); ydone = True; ycnt = cnt
            if ydone and not bdone and cnt >= ycnt + 3: out.append(("bar", t)); bdone = True
            out.append(o)
            if o[0] == "m":
                cnt += 1
                if cnt >= 6 and pendv: out.append(("v", pendv.pop(0)))
        if not ydone: out.append(("y", t-1))
        if not bdone: out.append(("bar", t))
        assert not pendv
        ops += out
    freel = list(range(NRING)); slot = {}; nxt = 0; q = []
    barseen = 0
    def allowed(stage):
        return stage < 2 or barseen >= 2*(stage//2) - 1
    def issue():
        nonlocal nxt
        while freel and nxt < len(reads) and allowed(reads[nxt][1]):
            s = freel.pop(0); slot[nxt] = s
            a(f"ds_read_b128 {vr(RING+4*s,4)}, v2 offset:{reads[nxt][0]}"); q.append(("r", nxt)); nxt += 1
    def wait_for(item):
        if item in q:
            i = q.index(item); n = len(q) - 1 - i
            a(f"s_waitcnt lgkmcnt({min(n,15)})"); del q[:i+1]
    issue()
    nm = 0
    for o in ops:
        if o[0] == "m":
            rr = None
            if o[2] is not None:
                assert o[2] in slot, "read not issued"
                wait_for(("r", o[2])); rr = RING + 4*slot[o[2]]
            a(o[1](rr)); nm += 1
        elif o[0] == "free":
            freel.append(slot[o[1]]); issue()
        elif o[0] == "v": a(o[1])
        elif o[0] == "y":
            a(f"ds_write_b128 v5, {vr(acc(o[1]),4)} offset:{1280*o[1]}"); q.append(("y", o[1]))
        elif o[0] == "bar":
            wait_for(("y", o[1]-1)); a("s_barrier"); barseen = o[1]; issue()
    assert nm == 202, nm

def gen_final_row(a, cfg):
    a(f"""
    s_setprio 0
    v_mov_b32 v8, {L_MISC}
    ds_read_b128 v[12:15], v8
    s_and_b32 s44, s42, 0x70
    s_and_b32 s46, s42, 1
    s_lshl_b32 s46, s46, 3
    s_add_u32 s44, s44, s46
    s_bfe_u32 s46, s42, 0x30001
    s_add_u32 s44, s44, s46
    s_lshl_b32 s44, s44, 4
    s_add_u32 s44, s44, {WS_FP}
    v_min_u32 v9, 55, v1
    v_mul_u32_u24 v9, 1792, v9
    v_add_u32 v9, s44, v9
    global_load_dwordx4 v[16:19], v9, {WS} sc1
    s_lshr_b32 s57, {TAG}, 8
    s_lshr_b32 s58, {TAG}, 16
    s_lshr_b32 s59, {TAG}, 24
    s_waitcnt lgkmcnt(0)
    v_max3_u32 v12, v12, v13, v14
    v_max_u32 v12, v12, v15             ; key
    v_not_b32 v13, v12
    v_and_b32 v13, 0x7ff, v13           ; idx
    v_mul_u32_u24 v10, 896, v13
    s_lshl_b32 s44, s42, 2
    s_add_u32 s44, s44, s45
    s_lshl_b32 s44, s44, 1
    v_add_u32 v10, s44, v10
    global_load_ushort v20, v10, {X}
    s_mul_i32 s44, s45, {XNSZ}
    s_add_u32 s44, s44, 512
    v_lshl_add_u32 v14, v13, 1, s44
    ds_read_u16 v21, v14
    v_lshrrev_b32 v14, 8, v13
    v_mul_u32_u24 v14, 1280, v14
    v_and_b32 v15, 0xf0, v13
    v_add_u32 v14, v14, v15
    v_bfe_u32 v15, v13, 2, 2
    v_mul_u32_u24 v15, 320, v15
    v_add_u32 v14, v14, v15
    v_and_b32 v15, 3, v13
    v_lshl_add_u32 v14, v15, 2, v14
    s_mul_i32 s44, s45, {YCH}
    s_add_u32 s44, s44, {L_Y}
    v_add_u32 v14, s44, v14
    ds_read_b32 v22, v14
    v_ashrrev_i32 v23, 31, v12
    v_not_b32 v23, v23
    v_or_b32 v23, 0x80000000, v23
    v_xor_b32 v23, v23, v12
    v_cvt_pk_bf16_f32 v23, 0, v23
    v_mul_f32 v23, {fhex(-LOG2E)}, v23
    v_exp_f32 v23, v23
    v_add_f32 v23, 1.0, v23
    v_rcp_f32 v23, v23
    v_cvt_pk_bf16_f32 v23, 0, v23
    s_lshl_b32 s44, s45, 4
    s_lshr_b64 s[62:63], s[62:63], s44
    s_lshl_b32 s62, s62, 16             ; Dskip
    s_waitcnt lgkmcnt(0)
    v_lshlrev_b32 v21, 16, v21          ; xn
    v_fma_f32 v22, v21, s62, v22        ; s
    s_mov_b32 s54, 0
    s_branch L_fin_chk
    L_fin_poll:
    global_load_dwordx4 v[16:19], v9, {WS} sc1
    L_fin_chk:
    s_add_u32 s54, s54, 1
    s_waitcnt vmcnt(0)
    v_xor_b32 v24, {TAG}, v16
    v_xor_b32 v25, s57, v17
    v_xor_b32 v26, s58, v18
    v_xor_b32 v27, s59, v19
    v_or3_b32 v24, v24, v25, v26
    v_or_b32 v24, v24, v27
    v_and_b32 v24, 0xff, v24
    v_cmp_ne_u32 vcc, 0, v24
    s_cbranch_vccz L_fin_got
    s_cmp_lt_u32 s54, {POLL_MAX}
    s_cbranch_scc1 L_fin_poll
    L_fin_got:
    s_bitcmp1_b32 s45, 0
    s_cselect_b64 s[48:49], -1, 0
    v_cndmask_b32 v16, v16, v17, s[48:49]
    v_cndmask_b32 v18, v18, v19, s[48:49]
    s_bitcmp1_b32 s45, 1
    s_cselect_b64 s[48:49], -1, 0
    v_cndmask_b32 v16, v16, v18, s[48:49]
    s_mov_b32 s48, -1
    s_mov_b32 s49, 0x00ffffff
    v_cndmask_b32 v16, 0, v16, s[48:49]
    """)
    stamp(a, cfg, 6)
    dpp_reduce64(a, "v_add_f32", [16])
    a(f"""
    v_cvt_pk_bf16_f32 v16, 0, v16
    v_mul_f32 v16, v16, v23
    v_cvt_pk_bf16_f32 v16, 0, v16
    v_add_f32 v16, v16, v21
    v_cvt_pk_bf16_f32 v16, 0, v16       ; z
    v_mul_f32 v17, {fhex(-LOG2E)}, v16
    v_exp_f32 v17, v17
    v_lshlrev_b32 v20, 16, v20
    v_add_f32 v17, 1.0, v17
    v_rcp_f32 v17, v17
    v_mul_f32 v16, v16, v22
    v_fma_f32 v16, v16, v17, v20
    v_cvt_pk_bf16_f32 v16, v16, v16
    s_mov_b32 exec_lo, 0
    s_mov_b32 exec_hi, 0x80000000
    global_store_short v10, v16, {OUT}
    s_mov_b64 exec, -1
    """)
    stamp(a, cfg, 7)
    a("s_branch L_exit")

def gen_helper(a, cfg, ACC, DT):
    XF = 64
    Q = 96
    G = 128
    Y = 136
    TM = 144
    a("L_helper:")
    for k in range(12): a(f"v_mul_f32 v{ACC+k}, v{ACC+k}, v{DT}")
    for k in range(3): a(f"ds_write_b128 v20, {vr(ACC+4*k,4)} offset:{1024*k}")
    a(f"""
    s_lshl_b32 s44, s45, 8
    s_mov_b32 m0, s44
    s_lshl_b32 s56, s62, 16
    s_and_b32 s57, s62, 0xffff0000
    s_lshl_b32 s58, s63, 16
    s_and_b32 s59, s63, 0xffff0000
    s_mov_b32 s60, {fhex(-LOG2E)}
    s_waitcnt lgkmcnt(0)
    s_barrier
    """)
    stamp(a, cfg, 2)
    a(f"""
    v_mov_b32 v22, 0
    v_mov_b32 v23, 0
    s_mul_i32 s44, s45, {XNSZ}
    v_lshl_add_u32 v21, v1, 3, s44
    ds_write_b64 v21, v[22:23]
    s_and_b32 s44, s45, 1
    s_lshl_b32 s44, s44, 6
    v_add_u32 v24, s44, v1
    v_lshrrev_b32 v25, 3, v24
    v_lshlrev_b32 v25, 4, v25
    v_bfe_u32 v26, v24, 1, 2
    v_mul_u32_u24 v26, 320, v26
    v_and_b32 v27, 1, v24
    v_lshlrev_b32 v27, 3, v27
    v_add3_u32 v25, v25, v26, v27
    s_lshr_b32 s44, s45, 1
    s_mul_i32 s44, s44, 1280
    s_add_u32 s44, s44, {L_Y}
    v_add_u32 v5, s44, v25
    s_waitcnt vmcnt(4)
    """)
    for i in range(4):
        for row in range(2):
            for p in range(2):
                s = XRAW + 4*i + 2*row + p; d = XF + 8*i + 4*row + 2*p
                a(f"v_lshlrev_b32 v{d}, 16, v{s}\nv_and_b32 v{d+1}, s43, v{s}")
    a("s_mov_b32 s54, 0\ns_branch L_h_chk\nL_h_poll:")
    stats_loads(a)
    a(f"""
    L_h_chk:
    s_add_u32 s54, s54, 1
    s_waitcnt vmcnt(0)
    """)
    for i in range(4):
        g = GR + 4*i
        a(f"v_xor_b32 v{TM+2*i}, v{g}, v{g+1}\nv_xor_b32 v{TM+2*i+1}, v{g+2}, v{g+3}")
    for i in range(4): a(f"v_xor_b32 v{TM+2*i}, v{TM+2*i}, v{TM+2*i+1}")
    for i in range(4): a(f"v_xor_b32 v{TM+2*i}, {TAG}, v{TM+2*i}")
    a(f"""
    v_or3_b32 v{TM}, v{TM}, v{TM+2}, v{TM+4}
    v_or_b32 v{TM}, v{TM}, v{TM+6}
    v_cmp_ne_u32 vcc, 0, v{TM}
    s_cbranch_vccz L_h_got
    s_cmp_lt_u32 s54, {POLL_MAX}
    s_cbranch_scc1 L_h_poll
    L_h_got:
    """)
    stamp(a, cfg, 3)
    def norm(i):
        g = GR + 4*i; t = TM
        a(f"""
        v_and_b32 v{t+2}, s43, v{g}
        v_and_b32 v{t+3}, s43, v{g+1}
        v_lshlrev_b32 v{t}, 16, v{g}
        v_lshlrev_b32 v{t+1}, 16, v{g+1}
        v_rcp_f32 v{t+2}, v{t+2}
        v_rcp_f32 v{t+3}, v{t+3}
        """)
        for k in range(8): a(f"v_sub_f32 v{Q+8*i+k}, v{XF+8*i+k}, v{t+k//4}")
        for k in range(8): a(f"v_cvt_pk_bf16_f32 v{Q+8*i+k}, 0, v{Q+8*i+k}")
        for c in range(4):
            a(f"v_mul_f32 v{Q+8*i+c}, v{Q+8*i+c}, v{t+2}\nv_mul_f32 v{Q+8*i+4+c}, v{Q+8*i+4+c}, v{t+3}")
            a(f"v_cvt_pk_bf16_f32 v{t+4+c}, v{Q+8*i+c}, v{Q+8*i+4+c}")
            a(f"ds_write_addtid_b32 v{t+4+c} offset:{c*XNSZ + 512 + 1024*i}")
    def gate(i):
        for k in range(8): a(f"v_mul_f32 v{G+k}, s60, v{Q+8*i+k}")
        for k in range(8): a(f"v_exp_f32 v{G+k}, v{G+k}")
        for k in range(8): a(f"v_add_f32 v{G+k}, 1.0, v{G+k}")
        for k in range(8): a(f"v_rcp_f32 v{G+k}, v{G+k}")
        for k in range(8): a(f"v_mul_f32 v{G+k}, v{G+k}, v{Q+8*i+k}")
    def epi(i):
        for c in range(4): a(f"ds_read_b64 {vr(Y+2*c,2)}, v5 offset:{c*YCH + 2560*i}")
        a(f"""
        v_add_u32 v{TM+8}, {512*i}, v254
        v_cmp_ne_u32 s[46:47], s61, v{TM+8}
        v_add_u32 v{TM+8}, 1, v{TM+8}
        v_cmp_ne_u32 s[48:49], s61, v{TM+8}
        """)
        for c in range(4):
            a(f"s_waitcnt lgkmcnt({3-c})")
            for row in range(2):
                k = 4*row + c
                a(f"v_fma_f32 v{Y+2*c+row}, v{Q+8*i+k}, s{56+c}, v{Y+2*c+row}")
            for row in range(2):
                k = 4*row + c
                a(f"v_fma_f32 v{Y+2*c+row}, v{Y+2*c+row}, v{G+k}, v{XF+8*i+k}")
        o = TM + 10 + 4*(i & 1)
        for row in range(2):
            for p in range(2): a(f"v_cvt_pk_bf16_f32 v{o+2*row+p}, v{Y+4*p+row}, v{Y+4*p+2+row}")
        a(f"""
        s_mov_b64 exec, s[46:47]
        global_store_dwordx2 v{VCOL+i}, {vr(o,2)}, {OUT}
        s_mov_b64 exec, s[48:49]
        global_store_dwordx2 v{VCOL+i}, {vr(o+2,2)}, {OUT} offset:896
        s_mov_b64 exec, -1
        """)
    bar = "s_waitcnt lgkmcnt(0)\ns_barrier"
    norm(0); a(bar)
    stamp(a, cfg, 4)
    norm(1)
    a(f"v_max3_u32 v{TM+8}, v{GR+2}, v{GR+6}, v{GR+10}\nv_max_u32 v{TM+8}, v{TM+8}, v{GR+14}")
    dpp_reduce64(a, "v_max_u32", [TM+8])
    a(f"""
    s_lshl_b32 s44, s45, 2
    s_add_u32 s44, s44, {L_MISC}
    v_mov_b32 v{TM+9}, s44
    s_mov_b32 exec_lo, 0
    s_mov_b32 exec_hi, 0x80000000
    ds_write_b32 v{TM+9}, v{TM+8}
    s_mov_b64 exec, -1
    v_mov_b32 v{TM+9}, {L_MISC}
    """)
    a(bar)
    a(f"ds_read_b128 {vr(Y,4)}, v{TM+9}")
    gate(0)
    a(f"""
    s_waitcnt lgkmcnt(0)
    v_max3_u32 v{Y}, v{Y}, v{Y+1}, v{Y+2}
    v_max_u32 v{Y}, v{Y}, v{Y+3}
    v_readfirstlane_b32 s61, v{Y}
    s_andn2_b32 s61, 0x7ff, s61         ; idx
    """)
    a("s_barrier")
    epi(0); norm(2); a(bar)
    gate(1); a("s_barrier")
    epi(1); norm(3); a(bar)
    gate(2); a("s_barrier")
    epi(2); gate(3); a("s_barrier")
    a("s_cmp_lt_u32 s45, 2\ns_cbranch_scc1 L_h_last\ns_barrier\nL_h_last:")
    stamp(a, cfg, 5)
    epi(3)
    a("s_cmp_lt_u32 s45, 2\ns_cbranch_scc0 L_h_end\ns_barrier\nL_h_end:")
    stamp(a, cfg, 6)
    if cfg.stamps: a("s_waitcnt vmcnt(0)")
    stamp(a, cfg, 7)
    if cfg.dump == "xy":
        a("s_mov_b32 s46, 0")
        a(f"s_cmp_lg_u32 {WID}, 7\ns_cbranch_scc1 L_exit")
        dump_lds(a, "s46", 4*XNSZ + 4*YCH, "xy", perwave=False)

def dump_lds(a, sbase, nbytes, lab, perwave=True):
    a(f"""
    s_lshl_b32 s44, s42, 2
    {'s_add_u32 s44, s44, s45' if perwave else ''}
    s_lshl_b32 s44, s44, 16
    s_add_u32 s44, s44, {WS_DUMP}
    v_lshlrev_b32 v228, 2, v1
    v_add_u32 v229, s44, v228
    v_add_u32 v228, {sbase}, v228
    s_mov_b32 s44, 0
    L_dump_{lab}:
    ds_read_b32 v230, v228
    s_waitcnt lgkmcnt(0)
    global_store_dword v229, v230, {WS}
    v_add_u32 v228, 256, v228
    v_add_u32 v229, 256, v229
    s_add_u32 s44, s44, 256
    s_cmp_lt_u32 s44, {nbytes}
    s_cbranch_scc1 L_dump_{lab}
    s_waitcnt vmcnt(0)
    """)

def gen_exit(a, cfg):
    a("L_exit:")
    if cfg.stamps:
        a("s_waitcnt lgkmcnt(0)")
        for k in range(8): a(f"v_mov_b32 v{8+k}, s{64+2*k}")
        a(f"""
        s_lshl_b32 s44, s2, 3
        s_add_u32 s44, s44, {WID}
        s_lshl_b32 s44, s44, 5
        s_add_u32 s44, s44, 0x80000
        v_mov_b32 v2, s44
        s_mov_b64 exec, 1
        global_store_dwordx4 v2, v[8:11], {WS}
        global_store_dwordx4 v2, v[12:15], {WS} offset:16
        """)
    a("s_endpgm")

def generate(cfg):
    a = Asm()
    if cfg.stamps:
        for k in range(1, 8): a(f"s_mov_b64 s[{64+2*k}:{65+2*k}], 0")
    gen_entry(a, cfg)
    gen_ln(a, cfg)
    gen_ffn(a, cfg)
    gen_conv(a, cfg)
    gen_exit(a, cfg)
    a("L_code_end:")
    gen_janitor(a, cfg)
    body = a.finish()
    hdr = open(f"cdna_kernels/{NAME}.s.ref").read().split("; Override launch")[0]
    s = hdr + f"; @launch grid=(256,1,1) block=(512,1,1) lds={LDS_SIZE}\n"
    s += f""".amdgcn_target "amdgcn-amd-amdhsa--gfx950"
.text
.globl {KN}
.p2align 8
.type {KN},@function
{KN}:
""" + body + f""".section .rodata,"a"
.p2align 6
.amdhsa_kernel {KN}
  .amdhsa_next_free_vgpr 256
  .amdhsa_next_free_sgpr 96
  .amdhsa_accum_offset 256
  .amdhsa_group_segment_fixed_size 0
  .amdhsa_kernarg_size 136
  .amdhsa_user_sgpr_count 2
  .amdhsa_user_sgpr_kernarg_segment_ptr 1
  .amdhsa_system_sgpr_workgroup_id_x 1
.end_amdhsa_kernel
"""
    return s

if __name__ == "__main__":
    kw = {}
    out = f"cdna_kernels/{NAME}.s"
    for arg in sys.argv[1:]:
        k, v = arg.split("=")
        if k == "out": out = v
        else: kw[k] = {"True": True, "False": False, "None": None}.get(v, int(v) if v.lstrip("-").isdigit() else v)
    open(out, "w").write(generate(Cfg(**kw)))
    print("wrote", out)
```

```python
import sys, struct
sys.path.insert(0, "gen")
from asmlib import Asm, merge

NAME = "recurrent_scan__ssm_conv_s4__moe_arch_mod__prompt"
KN = NAME + "_kernel"

def f2u(x): return struct.unpack("<I", struct.pack("<f", x))[0]
def fhex(x): return "0x%08x" % f2u(x)
def f32(x): return struct.unpack("<f", struct.pack("<f", x))[0]
import math
LOG2E = 1.4426950408889634; LOG2E_HI = f32(LOG2E); LOG2E_LO = LOG2E - LOG2E_HI
I2PI = 1.0/(2*math.pi); I2PI_HI = f32(I2PI); I2PI_LO = I2PI - I2PI_HI

X, ARE, AIM, BRE, BIM, CRE, CIM, LDT = ["s[%d:%d]" % (4+2*i, 5+2*i) for i in range(8)]
DSK, BX, WR, WG, WU, WD, OUT, DBG, WS = ["s[%d:%d]" % (20+2*i, 21+2*i) for i in range(9)]
TAG = "s38"; WID = "s39"
WS_ACK = 0x1000; WS_STATS = 0x4000; WS_FP = 0x10000; WS_DUMP = 0x100000
NLN = 128; FFN0 = 100; NACK = 240
POLL_MAX = 1 << 17
RS = 2064
BETA0 = 24*RS
L_DX = 56*RS
L_TAB = L_DX + 12288
T1E = 1088
T1O = 1088 + 1216 + 6
T3B = 2432 + 640
T4B = 2944 + 512
TABSZ = 3328
L_MISC = L_TAB + 4*TABSZ
LDS_SIZE = L_MISC + 256
XNSZ = 4608; L_XN = 0; L_Y = 4*XNSZ; YCH = 10240
assert T1E - 2*544 >= 0 and T1E + 28 + 4 <= T1O - 2*543 and T1O + 2*13 + 4 <= T3B - 640
assert T3B - 2*69 + 2 <= T4B - 512 and T4B - 2*99 + 2 <= TABSZ and (T1O-6) % 8 == 0 and T3B % 8 == 0 and L_TAB % 16 == 0

def vr(a, n): return "v[%d:%d]" % (a, a+n-1)

class Cfg:
    dump = None
    stamps = False
    wbl2 = None
    outbits = ''
    diagwg = None
    diag = None
    fine = None
    nocol = False
    wpf = "late"
    def __init__(self, **kw): self.__dict__.update(kw)

ROLE = ["all"]
def stamp(a, cfg, k):
    if cfg.diag == f"{ROLE[0]}{k}": a("s_memrealtime s[64:65]")
    if cfg.stamps and (k == 0 or not cfg.fine): a(f"s_memrealtime s[{64+2*k}:{65+2*k}]")
def fstamp(cfg, name):
    if cfg.stamps and cfg.fine and name in cfg.fine:
        k = 1 + cfg.fine.index(name); o = [f"s_memrealtime s[{64+2*k}:{65+2*k}]"]
        if name + "c" in cfg.fine:
            k = 1 + cfg.fine.index(name + "c"); o.append(f"s_memtime s[{64+2*k}:{65+2*k}]")
        return o
    return []

def dpp_allreduce16(a, op, regs):
    for m in ("quad_perm:[1,0,3,2]", "quad_perm:[2,3,0,1]", "row_half_mirror", "row_mirror"):
        for r in regs: a(f"{op}_dpp v{r}, v{r}, v{r} {m} row_mask:0xf bank_mask:0xf")
def dpp_reduce64(a, op, regs):
    dpp_allreduce16(a, op, regs)
    for r in regs: a(f"{op}_dpp v{r}, v{r}, v{r} row_bcast:15 row_mask:0xa bank_mask:0xf")
    for r in regs: a(f"{op}_dpp v{r}, v{r}, v{r} row_bcast:31 row_mask:0xc bank_mask:0xf")

def make_tag(a):
    a(f"s_mul_i32 {TAG}, {TAG}, 1664525\ns_add_u32 {TAG}, {TAG}, 1013904223")

def code_prefetch(a, lab0, lab1, vtmp, vdst):
    a(f"""
    s_getpc_b64 s[46:47]
    L_pc_{lab0}:
    s_add_u32 s46, s46, {lab0}-L_pc_{lab0}
    s_addc_u32 s47, s47, 0
    v_lshlrev_b32 v{vtmp}, 7, v0
    v_cmp_gt_u32 vcc, {lab1}-{lab0}, v{vtmp}
    s_and_saveexec_b64 s[48:49], vcc
    s_cbranch_execz L_pfskip_{lab0}
    global_load_dword v{vdst}, v{vtmp}, s[46:47]
    L_pfskip_{lab0}:
    s_mov_b64 exec, s[48:49]
    """)

def gen_entry(a, cfg):
    ROLE[0] = "all"
    stamp(a, cfg, 0)
    a(f"""
    s_load_dwordx16 s[4:19], s[0:1], 0
    s_load_dwordx16 s[20:35], s[0:1], 64
    s_load_dwordx2 s[36:37], s[0:1], 128
    v_lshrrev_b32 v2, 6, v0
    v_and_b32 v1, 63, v0
    v_readfirstlane_b32 {WID}, v2
    s_cmp_ge_u32 s2, {NLN}
    s_cbranch_scc1 L_notln
    """)
    if cfg.diagwg is not None:
        a(f"s_cmp_lg_u32 s2, {cfg.diagwg}\ns_cbranch_scc1 L_nodw\ns_memrealtime s[64:65]\nL_nodw:")

def wprefetch(a):
    a(f"""
    s_cmp_ge_u32 s2, 96
    s_cbranch_scc1 L_wpf_done
    s_and_b32 s44, s2, 7
    s_add_u32 s44, s44, {(8 - FFN0 % 8) % 8}
    s_and_b32 s44, s44, 7
    s_lshr_b32 s45, s2, 3
    s_mul_i32 s45, s45, 40
    v_mul_u32_u24 v50, 1639, v0
    v_lshrrev_b32 v50, 16, v50          ; tid/40 (0..12)
    v_mul_u32_u24 v51, 40, v50
    v_sub_u32 v51, v0, v51
    v_add_u32 v51, s45, v51
    v_min_u32 v51, 447, v51
    v_and_b32 v52, 3, v50
    v_lshl_add_u32 v52, v52, 3, s44
    v_min_u32 v52, 27, v52              ; block f
    v_lshrrev_b32 v50, 2, v50
    v_mul_u32_u24 v53, 3584, v51
    v_lshl_add_u32 v53, v52, 7, v53
    v_mul_u32_u24 v54, 448, v52
    v_add_lshl_u32 v54, v54, v51, 7
    """)
    for m, (base, off) in enumerate(((WG, 53), (WU, 53), (WD, 54))):
        a(f"""
        v_cmp_eq_u32 vcc, {m}, v50
        s_and_saveexec_b64 s[48:49], vcc
        s_cbranch_execz L_wpf_{m}
        global_load_dword v55, v{off}, {base}
        L_wpf_{m}:
        s_mov_b64 exec, s[48:49]
        """)
    a("L_wpf_done:")

def gen_ln(a, cfg):
    ROLE[0] = "ln"
    a(f"""
    v_and_b32 v5, 31, v0
    v_lshrrev_b32 v2, 5, v0
    s_lshl_b32 s40, s2, 4
    v_add_u32 v3, s40, v2              ; row
    v_mul_u32_u24 v4, 896, v3
    v_lshlrev_b32 v5, 4, v5
    v_add_u32 v6, v4, v5
    """)
    for r in range(8, 25): a(f"v_mov_b32 v{r}, 0")
    a(f"""
    s_mov_b32 s41, 0x3f803f80
    s_mov_b32 exec_lo, 0x0fffffff
    s_mov_b32 exec_hi, 0x0fffffff
    s_waitcnt lgkmcnt(0)
    global_load_dwordx4 v[8:11], v6, {X}
    global_load_dwordx4 v[12:15], v6, {X} offset:448
    global_load_ushort v24, v4, {X}
    global_load_dwordx4 v[16:19], v5, {WR}
    global_load_dwordx4 v[20:23], v5, {WR} offset:448
    s_mov_b64 exec, -1
    s_load_dword {TAG}, {WS}, 0
    """)
    code_prefetch(a, "L_ln_body", "L_notln", 26, 27)
    a(f"""
    L_ln_body:
    v_sub_u32 v7, 2047, v3
    v_lshlrev_b32 v2, 3, v2
    s_mov_b32 s42, {fhex(1.0/448)}
    s_mov_b32 s43, 0xffff0000
    s_waitcnt vmcnt(0)
    """)
    stamp(a, cfg, 1)
    S_, Q_, XW, SW = 30, 31, 32, 33
    for i in range(8):
        c = lambda r: "0" if i == 0 else f"v{r}"
        a(f"v_dot2_f32_bf16 v{S_}, v{8+i}, s41, {c(S_)}")
        a(f"v_dot2_f32_bf16 v{Q_}, v{8+i}, v{8+i}, {c(Q_)}")
        a(f"v_dot2_f32_bf16 v{XW}, v{8+i}, v{16+i}, {c(XW)}")
        a(f"v_dot2_f32_bf16 v{SW}, v{16+i}, s41, {c(SW)}")
    a(f"""
    v_lshlrev_b32 v24, 16, v24          ; pivot p
    v_mul_f32 v34, -16.0, v24
    v_add_f32 v34, v34, v{S_}           ; u = S - 16p
    v_add_f32 v35, v34, v{S_}
    v_fma_f32 v{XW}, -v24, v{SW}, v{XW}
    v_fma_f32 v{Q_}, -v24, v35, v{Q_}
    """.replace("-16.0", fhex(-16.0)))
    regs = [34, SW, XW, Q_]
    dpp_allreduce16(a, "v_add_f32", regs)
    for r in regs: a(f"v_add_f32_dpp v{r}, v{r}, v{r} row_bcast:15 row_mask:0xa bank_mask:0xf")
    a(f"""
    v_mul_f32 v34, s42, v34             ; mu
    v_mul_f32 v{Q_}, s42, v{Q_}
    v_add_f32 v36, v24, v34             ; mean
    v_fma_f32 v{Q_}, -v34, v34, v{Q_}
    v_max_f32 v{Q_}, 0, v{Q_}
    v_cvt_pk_bf16_f32 v{Q_}, 0, v{Q_}
    v_add_f32 v{Q_}, {fhex(1e-5)}, v{Q_}
    v_cvt_pk_bf16_f32 v{Q_}, 0, v{Q_}
    v_sqrt_f32 v{Q_}, v{Q_}
    v_cvt_pk_bf16_f32 v37, 0, v36       ; m as f32
    v_cvt_pk_bf16_f32 v40, v36, v{Q_}
    v_sub_f32 v37, v37, v24
    v_and_b32 v38, s43, v40
    v_rcp_f32 v38, v38
    v_fma_f32 v{XW}, -v37, v{SW}, v{XW}
    v_mul_f32 v{XW}, v{XW}, v38         ; r
    v_ashrrev_i32 v39, 31, v{XW}
    v_or_b32 v39, 0x80000000, v39
    v_xor_b32 v39, v39, v{XW}
    v_and_b32 v39, 0xfffff800, v39
    v_or_b32 v41, v39, v7               ; key
    s_mov_b32 exec_lo, 0x10000
    s_mov_b32 exec_hi, 0x10000
    ds_write_b64 v2, v[40:41]
    s_mov_b64 exec, -1
    s_waitcnt lgkmcnt(0)
    s_barrier
    """)
    make_tag(a)
    a(f"""
    s_cmp_lg_u32 {WID}, 0
    s_cbranch_scc1 L_ln_pubdone
    v_lshlrev_b32 v2, 4, v1
    s_mov_b64 exec, 0xff
    ds_read_b128 v[44:47], v2
    s_lshl_b32 s40, s2, 7
    s_add_u32 s40, s40, {WS_STATS}
    v_add_u32 v2, s40, v2
    s_lshl_b32 s40, s2, 2
    s_add_u32 s40, s40, {WS_ACK}
    v_mov_b32 v3, s40
    v_mov_b32 v4, {TAG}
    s_waitcnt lgkmcnt(0)
    v_max_u32 v42, v45, v47
    v_mov_b32 v40, v44
    v_mov_b32 v41, v46
    v_xor_b32 v43, v44, v46
    v_xor_b32 v43, v43, v42
    v_xor_b32 v43, {TAG}, v43
    global_store_dwordx4 v2, v[40:43], {WS} sc1
    s_mov_b64 exec, 1
    global_store_dword v3, v4, {WS} sc1
    s_mov_b64 exec, -1
    L_ln_pubdone:
    """)
    stamp(a, cfg, 2)
    a("s_barrier")
    if cfg.wpf == "late": wprefetch(a)
    if cfg.wbl2 == "ln":
        a(f"s_cmp_ge_u32 s2, 8\ns_cbranch_scc1 L_nowb\ns_cmp_lg_u32 {WID}, 7\ns_cbranch_scc1 L_nowb\nbuffer_wbl2 sc1\ns_waitcnt vmcnt(0)\nL_nowb:")
    a(f"""
    s_cmp_lt_u32 s2, {FFN0}
    s_cbranch_scc1 L_exit
    """)

def gen_ffn(a, cfg):
    ROLE[0] = "ffn"
    XS = 1024; KEYS = 512; PART = XS + 8192; HS = PART + 4096
    W1 = 64
    W2 = 128
    P1 = 160
    P2 = 224
    a(f"""
    s_sub_u32 s40, s2, {FFN0}           ; f
    v_and_b32 v2, 7, v1                 ; cg
    v_bfe_u32 v3, v1, 3, 1              ; e
    v_lshrrev_b32 v4, 4, v1             ; g
    s_mov_b32 s50, 0x05040100
    s_mov_b32 s51, 0x07060302
    s_mov_b32 s43, 0xffff0000
    s_cmp_eq_u32 {WID}, 7
    s_cbranch_scc1 L_ffn_noload
    s_lshl_b32 s44, {WID}, 6
    v_lshl_add_u32 v5, v4, 3, s44
    v_add_u32 v5, 1, v5
    v_mul_u32_u24 v5, 3584, v5
    s_lshl_b32 s44, s40, 7
    v_lshl_add_u32 v6, v2, 4, s44
    v_add_u32 v5, v5, v6
    v_cmp_eq_u32 s[52:53], 1, v3
    v_mov_b32 v6, s26
    v_mov_b32 v7, s28
    v_cndmask_b32 v6, v6, v7, s[52:53]
    v_mov_b32 v7, s27
    v_mov_b32 v8, s29
    v_cndmask_b32 v7, v7, v8, s[52:53]
    v_add_co_u32 v6, vcc, v6, v5
    v_addc_co_u32 v7, vcc, 0, v7, vcc
    s_lshl_b32 s44, s40, 6
    s_add_u32 s44, s44, 4
    v_lshl_add_u32 v9, v3, 5, s44
    v_lshl_add_u32 v9, v4, 3, v9
    v_mul_u32_u24 v9, 896, v9
    s_lshl_b32 s44, {WID}, 7
    v_lshl_add_u32 v8, v2, 4, s44
    v_add_u32 v9, v9, v8
    """)
    cur = 1
    for ks in range(2):
        for i in range(8):
            row = 32*ks + i
            if abs(row - cur) > 1:
                d = (row + 1 - cur)*3584; cur = row + 1
                a(f"v_add_co_u32 v6, vcc, {d}, v6\nv_addc_co_u32 v7, vcc, 0, v7, vcc")
            a(f"global_load_dwordx4 {vr(W1+32*ks+4*i,4)}, v[6:7], off offset:{(row-cur)*3584}")
    for i in range(8):
        a(f"global_load_dwordx4 {vr(W2+4*i,4)}, v9, {WD} offset:{(i-4)*896}")
    stamp(a, cfg, 3)
    for blk, (src, dst) in enumerate(((W1, P1), (W1+32, P1+32), (W2, P2))):
        for ip in range(4):
            a(f"s_waitcnt vmcnt({24 - (8*blk + 2*ip + 2)})")
            for c in range(8):
                a(f"v_perm_b32 v{dst+4*c+ip}, v{src+4*(2*ip+1)+c//2}, v{src+4*(2*ip)+c//2}, s{50+(c&1)}")
    a("L_ffn_noload:")
    stamp(a, cfg, 4)
    a(f"""
    v_and_b32 v10, 3, v1                ; m&3
    s_lshl_b32 s44, {WID}, 7
    s_add_u32 s44, s44, {XS}
    v_lshl_add_u32 v11, v4, 4, s44      ; XS + 16*(8w+g)
    v_mov_b32 v12, {XS+896}
    v_bfe_u32 v13, v1, 2, 1
    v_lshl_add_u32 v13, v13, 2, v4
    s_lshl_b32 s45, {WID}, 8
    s_add_u32 s45, s45, {HS}
    v_lshl_add_u32 v13, v13, 4, s45
    s_add_u32 s44, s45, 128
    v_mov_b32 v14, s44
    """)
    for r in range(4):
        a(f"""
        v_cmp_eq_u32 s[52:53], {r}, v10
        v_cndmask_b32 v{16+r}, v12, v11, s[52:53]
        v_cndmask_b32 v{20+r}, v14, v13, s[52:53]
        """)
    a(f"""
    v_mov_b32 v24, 0
    v_lshl_add_u32 v25, v1, 2, s45
    ds_write_b32 v25, v24
    v_lshl_add_u32 v26, v1, 1, s45
    s_lshl_b32 s44, {WID}, 11
    s_add_u32 s44, s44, {WS_STATS}
    v_lshl_add_u32 v27, v1, 4, s44
    s_mov_b32 s54, 0
    L_ffn_poll:
    global_load_dwordx4 v[28:31], v27, {WS} sc1
    global_load_dwordx4 v[32:35], v27, {WS} offset:1024 sc1
    s_add_u32 s54, s54, 1
    s_waitcnt vmcnt(0)
    v_xor_b32 v36, v28, v29
    v_xor_b32 v37, v30, v31
    v_xor_b32 v38, v32, v33
    v_xor_b32 v39, v34, v35
    v_xor_b32 v36, v36, v37
    v_xor_b32 v38, v38, v39
    v_cmp_ne_u32 vcc, {TAG}, v36
    v_cmp_ne_u32 s[52:53], {TAG}, v38
    s_or_b64 vcc, vcc, s[52:53]
    s_cbranch_vccz L_ffn_got
    s_cmp_lt_u32 s54, {POLL_MAX}
    s_cbranch_scc1 L_ffn_poll
    L_ffn_got:
    """)
    stamp(a, cfg, 5)
    a("v_max_u32 v36, v30, v34")
    dpp_reduce64(a, "v_max_u32", [36])
    a(f"""
    v_readlane_b32 s55, v36, 63
    s_and_b32 s56, s55, 0x7ff
    s_sub_u32 s56, 2047, s56            ; token
    s_mul_i32 s57, s56, 896
    v_lshlrev_b32 v37, 4, v1
    v_add_u32 v38, s57, v37
    v_mov_b32 v40, 0
    v_mov_b32 v41, 0
    v_mov_b32 v42, 0
    v_mov_b32 v43, 0
    s_mov_b32 exec_hi, 0x00ffffff
    global_load_dwordx4 v[40:43], v38, {X}
    s_mov_b64 exec, -1
    s_bfe_u32 s57, s56, 0x60001
    s_nop 3
    v_readlane_b32 s58, v28, s57
    v_readlane_b32 s59, v29, s57
    v_readlane_b32 s60, v32, s57
    v_readlane_b32 s61, v33, s57
    s_bitcmp1_b32 s56, 0
    s_cselect_b32 s58, s59, s58
    s_cselect_b32 s60, s61, s60
    s_bitcmp1_b32 s56, 7
    s_cselect_b32 s58, s60, s58         ; stats
    s_lshl_b32 s59, s58, 16             ; m
    s_and_b32 s58, s58, 0xffff0000      ; den
    v_rcp_f32 v44, s58
    s_lshl_b32 s44, {WID}, 10
    s_add_u32 s44, s44, {XS}
    v_add_u32 v37, s44, v37
    s_lshl_b32 s44, {WID}, 2
    s_add_u32 s44, s44, {KEYS}
    v_mov_b32 v45, s44
    v_mov_b32 v46, s55
    v_cmp_gt_u32 s[52:53], 56, v1
    v_cndmask_b32 v44, 0, v44, s[52:53]
    ds_write_b32 v45, v46
    s_waitcnt vmcnt(0)
    """)
    for k in range(4):
        a(f"v_lshlrev_b32 v{48+2*k}, 16, v{40+k}\nv_and_b32 v{49+2*k}, s43, v{40+k}")
    for k in range(8): a(f"v_subrev_f32 v{48+k}, s59, v{48+k}")
    for k in range(8): a(f"v_cvt_pk_bf16_f32 v{48+k}, 0, v{48+k}")
    for k in range(8): a(f"v_mul_f32 v{48+k}, v{48+k}, v44")
    for k in range(4): a(f"v_cvt_pk_bf16_f32 v{40+k}, v{48+2*k}, v{49+2*k}")
    a(f"""
    ds_write_b128 v37, v[40:43]
    v_mov_b32 v45, {KEYS}
    s_waitcnt lgkmcnt(0)
    s_barrier
    ds_read_b128 v[28:31], v45
    ds_read_b128 v[32:35], v45 offset:16
    s_waitcnt lgkmcnt(0)
    v_max3_u32 v28, v28, v29, v30
    v_max3_u32 v32, v32, v33, v34
    v_max3_u32 v28, v28, v31, v35
    v_max_u32 v28, v28, v32
    v_not_b32 v28, v28
    v_bfe_u32 v28, v28, 8, 3
    v_lshlrev_b32 v28, 10, v28
    """)
    stamp(a, cfg, 6)
    a(f"s_cmp_eq_u32 {WID}, 7\ns_cbranch_scc1 L_ffn_s1done")
    AF = 64
    for r in range(4): a(f"v_add_u32 v{16+r}, v{16+r}, v28")
    for ks in range(2):
        for r in range(4): a(f"ds_read_b128 {vr(AF+16*ks+4*r,4)}, v{16+r} offset:{64*ks}")
    D0 = 96
    n = 0
    for ks in range(2):
        for r in range(4):
            a(f"s_waitcnt lgkmcnt({7-(4*ks+r)})")
            for q in range(2):
                c = 4*q + r
                cc = "0" if (ks == 0 and r == 0) else vr(D0+4*q, 4)
                a(f"v_mfma_f32_16x16x32_bf16 {vr(D0+4*q,4)}, {vr(AF+16*ks+4*r,4)}, {vr(P1+32*ks+4*c,4)}, {cc}")
    a(f"""
    s_lshl_b32 s44, {WID}, 9
    s_add_u32 s44, s44, {PART}
    v_lshl_add_u32 v29, v3, 8, s44
    v_lshl_add_u32 v29, v2, 5, v29
    s_mov_b64 exec, 0xffff
    ds_write_b128 v29, {vr(D0,4)}
    ds_write_b128 v29, {vr(D0+4,4)} offset:16
    s_mov_b64 exec, -1
    L_ffn_s1done:
    v_lshlrev_b32 v30, 2, v1
    v_add_u32 v30, {PART}, v30
    s_waitcnt lgkmcnt(0)
    s_barrier
    s_cmp_eq_u32 {WID}, 7
    s_cbranch_scc1 L_exit
    """)
    for w in range(7): a(f"ds_read2st64_b32 {vr(104+2*w,2)}, v30 offset0:{2*w} offset1:{2*w+1}")
    a(f"""
    s_mov_b32 s44, {fhex(-LOG2E)}
    s_waitcnt lgkmcnt(0)
    v_add_f32 v104, v104, v106
    v_add_f32 v108, v108, v110
    v_add_f32 v112, v112, v114
    v_add_f32 v104, v104, v116
    v_add_f32 v108, v108, v112
    v_add_f32 v105, v105, v107
    v_add_f32 v104, v104, v108
    v_cvt_pk_bf16_f32 v104, 0, v104
    v_add_f32 v109, v109, v111
    v_mul_f32 v106, s44, v104
    v_exp_f32 v106, v106
    v_add_f32 v113, v113, v115
    v_add_f32 v105, v105, v117
    v_add_f32 v106, 1.0, v106
    v_rcp_f32 v106, v106
    v_add_f32 v109, v109, v113
    v_add_f32 v105, v105, v109
    v_mul_f32 v104, v104, v106
    v_cvt_pk_bf16_f32 v105, 0, v105
    v_cvt_pk_bf16_f32 v104, 0, v104
    v_mul_f32 v104, v104, v105
    v_cvt_pk_bf16_f32 v104, v104, v104
    ds_write_b16 v26, v104
    """)
    for r in range(4): a(f"ds_read_b128 {vr(AF+4*r,4)}, v{20+r}")
    a(f"""
    s_lshl_b32 s44, s40, 1
    v_add_u32 v31, s44, v3
    v_mul_u32_u24 v31, 1792, v31
    s_lshl_b32 s44, {WID}, 8
    s_add_u32 s44, s44, {WS_FP}
    v_lshl_add_u32 v32, v2, 4, s44
    v_add_u32 v31, v31, v32
    s_lshr_b32 s57, {TAG}, 8
    s_lshr_b32 s58, {TAG}, 16
    s_lshr_b32 s59, {TAG}, 24
    v_mov_b32 v33, 0xff
    """)
    for r in range(4):
        a(f"s_waitcnt lgkmcnt({3-r})")
        for q in range(2):
            c = 4*q + r
            cc = "0" if r == 0 else vr(D0+4*q, 4)
            a(f"v_mfma_f32_16x16x32_bf16 {vr(D0+4*q,4)}, {vr(AF+4*r,4)}, {vr(P2+4*c,4)}, {cc}")
    tb = [TAG, "s57", "s58", "s59"]
    for q in range(2):
        for r in range(4): a(f"v_bfi_b32 v{D0+4*q+r}, v33, {tb[r]}, v{D0+4*q+r}")
    a(f"""
    s_mov_b32 exec_lo, 0xff0000ff
    s_mov_b32 exec_hi, 0
    global_store_dwordx4 v31, {vr(D0,4)}, {WS} sc1
    global_store_dwordx4 v31, {vr(D0+4,4)}, {WS} offset:128 sc1
    s_mov_b64 exec, -1
    """)
    stamp(a, cfg, 7)
    a("s_branch L_exit")

def gen_janitor(a, cfg):
    a(f"""
    L_janitor:
    s_cmp_lg_u32 s2, 135
    s_cbranch_scc1 L_exit0
    s_cmp_lg_u32 {WID}, 0
    s_cbranch_scc1 L_exit0
    s_waitcnt lgkmcnt(0)
    s_load_dword {TAG}, {WS}, 0
    v_min_u32 v2, {NACK//4 - 1}, v1
    v_lshlrev_b32 v2, 4, v2
    v_add_u32 v2, {WS_ACK}, v2
    s_mov_b32 s54, 0
    s_waitcnt lgkmcnt(0)
    """)
    make_tag(a)
    a(f"""
    L_jan_poll:
    s_sleep 16
    global_load_dwordx4 v[4:7], v2, {WS} sc1
    s_add_u32 s54, s54, 1
    s_waitcnt vmcnt(0)
    v_xor_b32 v4, {TAG}, v4
    v_xor_b32 v5, {TAG}, v5
    v_xor_b32 v6, {TAG}, v6
    v_xor_b32 v7, {TAG}, v7
    v_or3_b32 v4, v4, v5, v6
    v_or_b32 v4, v4, v7
    v_cmp_ne_u32 vcc, 0, v4
    s_cbranch_vccz L_jan_got
    s_cmp_lt_u32 s54, {POLL_MAX}
    s_cbranch_scc1 L_jan_poll
    L_jan_got:
    v_mov_b32 v2, 0
    v_mov_b32 v3, {TAG}
    s_mov_b64 exec, 1
    global_store_dword v2, v3, {WS} sc1
    L_exit0:
    s_endpgm
    """)

ALPHA_ROW = {0:0, 1:1, 2:2, 3:3, 4:4, 5:5, 6:6, 7:7, 256:9, 258:10, 260:11, 8:12, 262:14, 264:15,
             516:16, 520:17, 1032:18, 1288:19, 772:20, 776:21, 1544:22, 1800:23}
ALPHA_TREE = [(1,0,0),(2,0,1),(3,1,1),(4,0,2),(5,1,2),(6,2,2),(7,3,2),(8,0,3),
              (256,0,8),(258,2,8),(260,4,8),(262,6,8),(264,8,8),
              (516,4,9),(520,8,9),(772,260,9),(776,264,9),
              (1032,8,10),(1288,264,10),(1544,520,10),(1800,776,10)]
BOX = 232; FIX = 252
XRAW = 232; VCOL = 248

def cmul16(d, x, y, conj=False):
    if not conj:
        return [f"v_pk_mul_f16 v{d}, v{x}, v{y} op_sel:[0,0] op_sel_hi:[0,1]",
                f"v_pk_fma_f16 v{d}, v{x}, v{y}, v{d} op_sel:[1,1,0] op_sel_hi:[1,0,1] neg_lo:[1,0,0]"]
    return [f"v_pk_mul_f16 v{d}, v{x}, v{y} op_sel:[0,0] op_sel_hi:[0,1] neg_hi:[1,0]",
            f"v_pk_fma_f16 v{d}, v{x}, v{y}, v{d} op_sel:[1,1,0] op_sel_hi:[1,0,1]"]
def csq32(d, s):
    return [f"v_pk_mul_f32 {vr(d,2)}, {vr(s,2)}, {vr(s,2)} op_sel:[0,0] op_sel_hi:[0,1]",
            f"v_pk_fma_f32 {vr(d,2)}, {vr(s,2)}, {vr(s,2)}, {vr(d,2)} op_sel:[1,1,0] op_sel_hi:[1,0,1] neg_lo:[1,0,0]"]

def gen_kgen(a, cfg):
    P = 10
    CA8, CHI, CLO, DT = 16, 17, 18, 19
    VA, VB = 8, 9
    ACC = 32
    FB, FA = 48, 80
    E = [112, 124]
    R = 136
    L = 156
    T = [180, 196]
    Wr = [212, 214]
    TMP = 216
    lreg = {}
    for k, al in enumerate([0]+[t[0] for t in ALPHA_TREE]): lreg[al] = L + k
    def unpack(d, s, g):
        return f"v_lshlrev_b32 v{d}, 16, v{s}" if g == 0 else f"v_and_b32 v{d}, s43, v{s}"
    def direct3(g):
        t = T[g]
        return [unpack(t+3, P+1, g), unpack(t+0, P+0, g),
                f"v_mul_f32 v{t+1}, v{t+3}, v{CHI}", f"v_mul_f32 v{t+0}, v{t+0}, v{CA8}",
                f"v_fma_f32 v{t+2}, v{t+3}, v{CHI}, -v{t+1}", f"v_fract_f32 v{t+5}, v{t+1}",
                f"v_fma_f32 v{t+2}, v{t+3}, v{CLO}, v{t+2}", f"v_exp_f32 v{t+3}, v{t+0}",
                f"v_add_f32 v{t+5}, v{t+5}, v{t+2}",
                f"v_cos_f32 v{t+4}, v{t+5}", f"v_sin_f32 v{t+5}, v{t+5}",
                f"v_mul_f32 v{t+4}, v{t+4}, v{t+3}", f"v_mul_f32 v{t+5}, v{t+5}, v{t+3}",
                f"v_cvt_pk_f16_f32 v{E[g]+3}, v{t+4}, v{t+5}"]
    def sq(g, b, base):
        b0 = 3 if b > 3 else 0
        s = base + 2*((b-1-b0) & 1); d = base + 2*((b-b0) & 1)
        return csq32(d, s) + [f"v_cvt_pk_f16_f32 v{E[g]+b}, v{d}, v{d+1}"]
    def direct0(g):
        t = T[g]
        return [f"v_mul_f32 v{t+1}, 0.125, v{t+1}".replace("0.125", fhex(0.125)), f"v_mul_f32 v{t+0}, {fhex(0.125)}, v{t+0}",
                f"v_fract_f32 v{t+9}, v{t+1}", f"v_exp_f32 v{t+2}, v{t+0}",
                f"v_cos_f32 v{t+8}, v{t+9}", f"v_sin_f32 v{t+9}, v{t+9}",
                f"v_mul_f32 v{t+8}, v{t+8}, v{t+2}", f"v_mul_f32 v{t+9}, v{t+9}, v{t+2}",
                f"v_cvt_pk_f16_f32 v{E[g]+0}, v{t+8}, v{t+9}"] + sq(g, 1, t+8) + sq(g, 2, t+8)
    def wsetup(g):
        t = TMP
        return [unpack(t, P+2, g), unpack(t+1, P+3, g), unpack(t+2, P+4, g), unpack(t+3, P+5, g),
                f"v_mul_f32 v{Wr[g]}, v{t+2}, v{t}", f"v_mul_f32 v{Wr[g]+1}, v{t+2}, v{t+1}",
                f"v_fma_f32 v{Wr[g]}, -v{t+3}, v{t+1}, v{Wr[g]}", f"v_fma_f32 v{Wr[g]+1}, -v{t+3}, v{t}, -v{Wr[g]+1}"]
    def wscale():
        t = TMP+4
        o = [f"v_max3_f32 v{t}, |v{Wr[0]}|, |v{Wr[0]+1}|, |v{Wr[1]}|", f"v_max_f32 v{t}, v{t}, |v{Wr[1]+1}|"]
        for m in ("quad_perm:[1,0,3,2] row_mask:0xf", "quad_perm:[2,3,0,1] row_mask:0xf", "row_half_mirror row_mask:0xf", "row_mirror row_mask:0xf",
                  "row_bcast:15 row_mask:0xa", "row_bcast:31 row_mask:0xc"):
            o.append(f"v_max_u32_dpp v{t}, v{t}, v{t} {m} bank_mask:0xf")
        o += [f"v_readlane_b32 s50, v{t}, 63",
              "s_lshr_b32 s50, s50, 23\ns_sub_u32 s50, 267, s50\ns_min_u32 s50, s50, 253\ns_sub_u32 s51, 254, s50\ns_lshl_b32 s50, s50, 23\ns_lshl_b32 s51, s51, 23"]
        for g in range(2): o += [f"v_mul_f32 v{Wr[g]}, s50, v{Wr[g]}", f"v_mul_f32 v{Wr[g]+1}, s50, v{Wr[g]+1}"]
        o += [f"v_mul_f32 v{DT}, s51, v{DT}"]
        return o
    def beta(g, inline_sq):
        o = ["s_mov_b32 m0, s53"]
        pend = []
        def wr(reg, j): return f"ds_write_addtid_b32 v{reg} offset:{j*RS}"
        for b in range(5):
            if inline_sq and b > 0: o += sq(g, 3+b, T[g]+4)
            e = E[g]+3+b
            o.append(wr(e, 1 << b))
            for j in range(1, 1 << b):
                src = (E[g]+3+j.bit_length()-1) if (j & (j-1)) == 0 else R+j
                jj = (1 << b) + j
                d = R+jj if jj < 16 else R+16+(jj & 3)
                o += cmul16(d, src, e)
                if pend: o.append(pend.pop())
                pend.append(wr(d, jj))
        return o + pend
    def alpha(g):
        o = [f"v_cvt_pk_f16_f32 v{lreg[0]}, v{Wr[g]}, v{Wr[g]+1}", "s_mov_b32 m0, s52"]
        pend = [f"ds_write_addtid_b32 v{lreg[0]} offset:0"]
        for (n, p, b) in ALPHA_TREE:
            o += cmul16(lreg[n], lreg[p], E[g]+b, conj=True)
            o.append(pend.pop())
            pend.append(f"ds_write_addtid_b32 v{lreg[n]} offset:{ALPHA_ROW[n]*RS}")
        return o + pend
    rdB = [f"ds_read_b128 {vr(FB+4*k,4)}, v{VB} offset:{32*k}" for k in range(8)]
    rdA = [f"ds_read_b128 {vr(FA+4*k,4)}, v{VA} offset:{32*k}" for k in range(8)]
    def mf(k, first): return f"v_mfma_f32_32x32x16_f16 {vr(ACC,16)}, {vr(FA+4*k,4)}, {vr(FB+4*k,4)}, {'0' if first else vr(ACC,16)}"
    def colload(i):
        if cfg.nocol: return []
        return [f"s_cmp_lt_u32 {WID}, 4\ns_cbranch_scc1 L_nocol{i}\n"
                f"global_load_dwordx2 {vr(XRAW+4*i,2)}, v{VCOL+i}, {X}\nglobal_load_dwordx2 {vr(XRAW+4*i+2,2)}, v{VCOL+i}, {X} offset:896\nL_nocol{i}:"]
    seq = []
    seq += fstamp(cfg, 'k0') + colload(0) + fstamp(cfg, 'k0b') + direct3(0)
    f1 = wsetup(0) + wsetup(1) + wscale() + direct0(0)
    b0 = beta(0, True)
    cut = max(i for i, l in enumerate(b0) if l.startswith(f"v_cvt_pk_f16_f32 v{E[0]+7},")) + 1
    nf = len(f1)*cut//len(b0)
    seq += merge(b0[:cut], f1[:nf], cut/max(nf,1))
    f1b = f1[nf:] + sq(0,8,T[0]+4) + sq(0,9,T[0]+4) + sq(0,10,T[0]+4)
    seq += merge(b0[cut:], f1b, (len(b0)-cut)/len(f1b))
    seq += fstamp(cfg, 'k1') + colload(1) + fstamp(cfg, 'k1b')
    f2 = rdB + direct3(1) + sq(1,4,T[1]+4) + sq(1,5,T[1]+4) + sq(1,6,T[1]+4) + sq(1,7,T[1]+4)
    a0 = alpha(0)
    seq += merge(a0, f2, len(a0)/len(f2))
    seq += fstamp(cfg, 'k2') + colload(2) + fstamp(cfg, 'k2b')
    seq += rdA
    b1 = beta(1, False)
    f3 = sq(1,8,T[1]+4) + sq(1,9,T[1]+4) + sq(1,10,T[1]+4) + direct0(1)
    head = 30
    seq += merge(b1[:head], f3[:10], 3)
    nds = sum(1 for l in b1[:head] if l.startswith("ds_"))
    seq += [f"s_waitcnt lgkmcnt({min(nds,15)})"]
    rest = merge(b1[head:], f3[10:], (len(b1)-head)/len(f3[10:]))
    seq += merge(rest, [mf(k, k == 0) for k in range(8)], len(rest)/8.5)
    seq += fstamp(cfg, 'k3') + colload(3) + fstamp(cfg, 'k3b')
    a1 = alpha(1)
    seq += merge(a1, rdB, 4)
    seq += rdA + fstamp(cfg, 'k4')
    for l in seq: a(l)
    a(f"s_cmp_lt_u32 {WID}, 4\ns_cbranch_scc1 L_nopoll0")
    stats_loads(a)
    a("L_nopoll0:")
    for k in range(8):
        a(f"s_waitcnt lgkmcnt({7-k})")
        a(mf(k, False))
    for l in fstamp(cfg, 'k5'): a(l)
    return ACC, DT

GR = 200
def stats_loads(a):
    for i in range(4):
        a(f"global_load_dwordx4 {vr(GR+4*i,4)}, v{252+i//2}, {WS} offset:{-4096 if i%2==0 else 0} sc1")

def boxmask(a, dst, lo, width, val, tmp):
    a(f"""
    v_add_u32 v{tmp}, {lo}, v3
    v_lshlrev_b32 v{tmp}, v{tmp}, v{tmp+3 + 0}
    """.replace(f"v{tmp+3 + 0}", f"v{tmp+3}"))
    a(f"v_lshrrev_b32 v{tmp}, v4, v{tmp}")
    for p in range(4):
        a(f"""
        v_bfe_u32 v{tmp+1}, v{tmp}, {2*p}, 1
        v_bfe_u32 v{tmp+2}, v{tmp}, {2*p+1}, 1
        v_lshl_or_b32 v{tmp+1}, v{tmp+2}, 16, v{tmp+1}
        v_mul_lo_u32 v{dst+p}, v{tmp+1}, s44
        """)

def gen_conv(a, cfg):
    ROLE[0] = "cv"
    a(f"""
    L_notln:
    s_cmp_ge_u32 s2, 256
    s_cbranch_scc1 L_exit0
    s_and_b32 s40, s2, 7
    s_cmp_eq_u32 s40, 7
    s_cbranch_scc1 L_janitor
    s_lshr_b32 s41, s2, 3
    s_sub_u32 s41, s41, 16              ; slot 0..15
    s_lshl_b32 s42, s40, 4
    s_add_u32 s42, s42, s41             ; cg
    s_and_b32 s45, {WID}, 3
    s_lshr_b32 s55, {WID}, 2
    s_lshl_b32 s44, s42, 2
    s_add_u32 s44, s44, s45
    s_lshl_b32 s44, s44, 9
    s_lshl_b32 s56, s55, 8
    s_add_u32 s44, s44, s56
    v_lshl_add_u32 v2, v1, 2, s44
    s_lshl_b32 s44, s41, 7
    v_lshrrev_b32 v3, 2, v0
    v_add_u32 v3, s44, v3
    v_mul_u32_u24 v3, 896, v3
    s_lshl_b32 s44, s40, 7
    v_add_u32 v3, s44, v3
    s_lshl_b32 s58, s42, 3              ; 8*cg
    s_waitcnt lgkmcnt(0)
    global_load_dword v10, v2, {ARE}
    global_load_dword v11, v2, {AIM}
    s_load_dwordx2 s[60:61], {LDT}, s58
    s_load_dwordx2 s[62:63], {DSK}, s58
    s_load_dword {TAG}, {WS}, 0
    global_load_dword v12, v2, {BRE}
    global_load_dword v13, v2, {BIM}
    global_load_dword v14, v2, {CRE}
    global_load_dword v15, v2, {CIM}
    global_load_dword v5, v3, {X}
    """)
    code_prefetch(a, "L_conv_body", "L_code_end", 6, 7)
    a(f"""
    L_conv_body:
    s_mov_b32 s43, 0xffff0000
    s_lshl_b32 s52, {WID}, 8            ; m0 for alpha rows
    s_add_u32 s53, s52, {BETA0}         ; m0 for beta rows
    ; zero the table area (4*TABSZ bytes) and write beta row 0 = 1+0i
    v_mov_b32 v20, 0
    v_mov_b32 v21, 0
    v_mov_b32 v22, 0
    v_mov_b32 v23, 0
    v_lshlrev_b32 v24, 4, v0
    v_add_u32 v24, {L_TAB}, v24
    ds_write_b128 v24, v[20:23]
    v_add_u32 v24, {4*TABSZ-8192}, v24
    ds_write_b128 v24, v[20:23]
    v_mov_b32 v25, 0x3c00
    s_mov_b32 m0, s53
    ds_write_addtid_b32 v25 offset:0
    ; fragment read addresses
    v_and_b32 v8, 31, v1
    v_mov_b32 v9, v8
    v_writelane_b32 v8, 4, 8
    v_writelane_b32 v8, 4, 40
    v_writelane_b32 v8, 11, 13
    v_writelane_b32 v8, 11, 45
    v_writelane_b32 v8, 13, 27
    v_writelane_b32 v8, 13, 59
    v_lshrrev_b32 v26, 5, v1
    v_lshl_add_u32 v26, v26, 4, s52
    v_mad_u32_u24 v8, v8, v27, v26
    v_mad_u32_u24 v9, v9, v27, v26
    v_add_u32 v9, {BETA0}, v9
    v_and_b32 v3, 15, v1
    v_lshrrev_b32 v4, 4, v1
    v_lshlrev_b32 v4, 3, v4             ; 8g
    s_cmp_lt_u32 {WID}, 4
    s_cbranch_scc0 L_hsetup
    """.replace("v_lshrrev_b32 v26, 5, v1", f"v_mov_b32 v27, {RS}\nv_lshrrev_b32 v26, 5, v1"))
    boxes = [(4-1, 3), (8-2, 5), (12-1, 3), (8-4, 9), (8-3, 7)]
    a("s_mov_b32 s44, 0x3f80")
    for k, (lo, w) in enumerate(boxes):
        a(f"v_mov_b32 v31, {(1<<w)-1}")
        boxmask(a, BOX+4*k, lo, w, 0x3f80, 28)
    a("s_mov_b32 s44, 0xffff\nv_mov_b32 v31, 3")
    boxmask(a, FIX, 12, 2, 0xffff, 28)
    a(f"""
    s_branch L_setupdone
    L_hsetup:
    s_lshl_b32 s44, s45, 6
    v_add_u32 v26, s44, v1              ; 64h + lane
    v_mul_u32_u24 v{VCOL}, 1792, v26
    v_add_u32 v{VCOL}, s58, v{VCOL}
    v_add_u32 v{VCOL+1}, {512*896}, v{VCOL}
    v_add_u32 v{VCOL+2}, {1024*896}, v{VCOL}
    v_add_u32 v{VCOL+3}, {1536*896}, v{VCOL}
    v_lshlrev_b32 v252, 4, v26
    v_add_u32 v252, {WS_STATS+4096}, v252
    v_add_u32 v253, 8192, v252
    v_lshlrev_b32 v254, 1, v26
    L_setupdone:
    s_waitcnt lgkmcnt(0)
    """)
    make_tag(a)
    a(f"""
    s_lshl_b32 s44, s45, 4
    s_lshr_b64 s[60:61], s[60:61], s44
    s_lshl_b32 s60, s60, 16
    v_mov_b32 v20, {fhex(LOG2E_HI)}
    v_mul_f32 v21, s60, v20
    v_fma_f32 v22, s60, v20, -v21
    v_mov_b32 v23, {fhex(LOG2E_LO)}
    v_fma_f32 v22, s60, v23, v22
    v_exp_f32 v21, v21
    v_mul_f32 v22, {fhex(math.log(2.0))}, v22
    v_fma_f32 v21, v21, v22, v21
    v_cvt_pk_bf16_f32 v19, 0, v21       ; dt
    v_mul_f32 v16, {fhex(8*LOG2E_HI)}, v19
    v_mov_b32 v20, {fhex(8*I2PI_HI)}
    v_mul_f32 v17, v19, v20
    v_fma_f32 v18, v19, v20, -v17
    v_mov_b32 v23, {fhex(8*I2PI_LO)}
    v_fma_f32 v18, v19, v23, v18
    ; ack
    s_cmp_lg_u32 {WID}, 0
    s_cbranch_scc1 L_noack
    s_lshl_b32 s44, s42, 2
    s_add_u32 s44, s44, {WS_ACK + 4*NLN}
    v_mov_b32 v20, s44
    v_mov_b32 v21, {TAG}
    s_waitcnt vmcnt(0)
    s_mov_b64 exec, 1
    global_store_dword v20, v21, {WS} sc1
    s_mov_b64 exec, -1
    s_branch L_kgen
    L_noack:
    s_waitcnt vmcnt(0)
    L_kgen:
    """)
    stamp(a, cfg, 1)
    ACC, DT = gen_kgen(a, cfg)
    a(f"""
    s_mul_i32 s44, s45, 3072
    s_add_u32 s44, s44, {L_DX}
    v_lshl_add_u32 v20, v1, 4, s44
    s_cmp_lt_u32 {WID}, 4
    s_cbranch_scc0 L_helper
    """)
    gen_mfma_wave(a, cfg, ACC, DT)
    gen_helper(a, cfg, ACC, DT)

AF = 64; T3 = 132; T4 = 156; Z4 = 172; Z8 = 204; ACCS = 8; ZT = 24; ZT8 = 220; RING = 40; NRING = 6

def gen_mfma_wave(a, cfg, ACC, DT):
    ROLE[0] = "mf"
    K = 48
    a(f"""
    s_mul_i32 s46, s45, {TABSZ}
    s_add_u32 s46, s46, {L_TAB}
    v_and_b32 v21, 31, v1               ; j
    v_lshrrev_b32 v22, 5, v1            ; h
    v_lshl_add_u32 v23, v21, 1, v22     ; 2j+h
    v_lshlrev_b32 v23, 3, v23
    s_add_u32 s44, s46, {T1E-8-512}
    v_sub_u32 v24, s44, v23
    s_add_u32 s44, s46, {T3B - 2*130}
    v_lshlrev_b32 v25, 2, v1            ; 4*(32h+j)
    v_sub_u32 v25, s44, v25
    v_lshl_add_u32 v26, v22, 6, v21     ; 64h+j
    v_lshlrev_b32 v26, 1, v26
    s_add_u32 s44, s46, {T4B - 2*161}
    v_sub_u32 v26, s44, v26             ; m8 = 161+64h+j (k11); k10 at +64
    v_mov_b32 v27, s46
    v_sub_u32 v28, v4, v3               ; 8g - q
    v_lshlrev_b32 v28, 1, v28
    v_and_b32 v29, 1, v3
    v_mul_u32_u24 v29, {T1O-T1E}, v29
    s_add_u32 s44, s46, {T1E - 32 - 1024}
    v_add3_u32 v28, v28, v29, s44
    v_add_u32 v29, 512, v28
    v_lshlrev_b32 v30, 2, v4
    v_lshlrev_b32 v31, 3, v3
    v_sub_u32 v30, v30, v31             ; 32g - 8a
    s_add_u32 s44, s46, {T3B - 8 - 512}
    v_add_u32 v30, s44, v30             ; T3(s,e) at +128*(4-s)+16e
    v_lshlrev_b32 v31, 1, v3
    v_sub_u32 v31, v4, v31
    v_lshlrev_b32 v31, 1, v31           ; 16g - 4a
    s_add_u32 s44, s46, {T4B - 4 - 448}
    v_add_u32 v31, s44, v31             ; T4(s) at +64*(7-s)
    s_barrier
    """)
    stamp(a, cfg, 2)
    for k in range(3): a(f"ds_read_b128 {vr(K+4*k,4)}, v20 offset:{1024*k}")
    a(f"""
    s_mul_i32 s44, s45, {XNSZ}
    v_lshlrev_b32 v2, 5, v3
    v_lshl_add_u32 v2, v4, 1, v2
    v_add_u32 v2, s44, v2
    s_mul_i32 s44, s45, {YCH}
    s_add_u32 s44, s44, {L_Y}
    v_mul_u32_u24 v5, 40, v4
    v_lshl_add_u32 v5, v3, 4, v5
    v_add_u32 v5, s44, v5
    """)
    for k in range(12):
        if k % 4 == 0: a(f"s_waitcnt lgkmcnt({2-k//4})")
        a(f"v_fma_f32 v{K+k}, v{ACC+k}, v{DT}, v{K+k}")
    pk = 8
    def cv(d, lo, hi): a(f"v_cvt_pk_bf16_f32 v{d}, v{K+lo}, v{K+hi}")
    cv(pk+0, 4, 3); cv(pk+1, 2, 1)
    cv(pk+2, 3, 2); cv(pk+3, 1, 0)
    a(f"ds_write_b64 v24, {vr(pk,2)} offset:512")
    cv(pk+4, 7, 7); cv(pk+5, 6, 5)
    a(f"ds_write_b64 v24, {vr(pk+2,2)} offset:{512 + T1O-6 - (T1E-8)}")
    cv(pk+6, 7, 6); cv(pk+7, 5, 5)
    a(f"ds_write_b64 v24, {vr(pk+4,2)}")
    cv(pk+8, 9, 8); cv(pk+9, 10, 11)
    a(f"""
    ds_write_b64 v24, {vr(pk+6,2)} offset:{T1O-6 - (T1E-8)}
    ds_write_b32 v25, v{pk+8}
    ds_write_b16 v26, v{pk+9} offset:64
    ds_write_b16_d16_hi v26, v{pk+9}
    s_mov_b64 exec, 1
    ds_write_b16_d16_hi v27, v{pk+3} offset:{T1E}
    s_mov_b32 exec_lo, 0
    s_mov_b32 exec_hi, 0x80000000
    ds_write_b32 v27, v{pk+4} offset:{T1E-1028}
    ds_write_b32 v27, v{pk+4} offset:{T1O-1026}
    ds_write_b16 v27, v{pk+4} offset:{T1O-1028}
    s_mov_b64 exec, -1
    ds_read_u16 v6, v27 offset:{T3B-512}
    """)
    order = [7, 15, 6, 14, 5, 13, 4, 12, 3, 11, 2, 10, 1, 9, 0, 8, 16]
    for n in order:
        off = 8*(32-2*n); base = 28
        if off >= 128: off -= 128; base = 29
        a(f"ds_read2_b32 {vr(AF+4*n,2)}, v{base} offset0:{off} offset1:{off+1}")
        a(f"ds_read2_b32 {vr(AF+4*n+2,2)}, v{base} offset0:{off+2} offset1:{off+3}")
    for s in (2,3,4):
        for e in range(2):
            d = T3 + 8*(s-2) + 4*e; off = 128*(4-s) + 16*e
            a(f"ds_read_b64 {vr(d,2)}, v30 offset:{off}\nds_read_b64 {vr(d+2,2)}, v30 offset:{off+8}")
    for s in range(4, 8):
        d = T4 + 4*(s-4); off = 16*(7-s)
        a(f"ds_read2_b32 {vr(d,2)}, v31 offset0:{off} offset1:{off+1}\nds_read2_b32 {vr(d+2,2)}, v31 offset0:{off+2} offset1:{off+3}")
    a("s_waitcnt lgkmcnt(0)")
    a("v_lshl_or_b32 v6, v6, 16, v6")
    for p in range(4): a(f"v_and_b32 v{FIX+p}, v6, v{FIX+p}")
    if cfg.dump == "ktab":
        dump_lds(a, "s46", TABSZ, "ktab")
    a("s_setprio 1")
    stamp(a, cfg, 3)
    a("s_barrier")
    stamp(a, cfg, 4)
    gen_conv_stream(a, cfg)
    stamp(a, cfg, 5)
    gen_final_row(a, cfg)

def gen_conv_stream(a, cfg):
    def acc(j): return ACCS + 4*(j % 4)
    def Afr(d): return AF + 4*(d//2)
    reads = []
    ops = []
    started = set()
    def mm(j, s0, s1, rd=None):
        c = vr(acc(j),4) if j in started else "0"; started.add(j)
        ops.append(("m", (lambda rr, j=j, s0=s0, s1=s1, c=c: f"v_mfma_f32_16x16x32_bf16 {vr(acc(j),4)}, {vr(s0 if s0 is not None else rr,4)}, {vr(s1 if s1 is not None else rr,4)}, {c}"), rd))
    def zm(d, box, rd):
        ops.append(("m", (lambda rr, d=d, box=box: f"v_mfma_f32_16x16x32_bf16 {vr(d,4)}, {vr(rr,4)}, {vr(BOX+4*box,4)}, 0"), rd))
    def rd(off, stage): reads.append((off, stage)); return len(reads)-1
    last = None
    for t in range(9):
        pendv = []
        if t >= 1:
            tp = t-1
            if tp <= 5:
                x8 = rd(480 + 512*tp - 16, tp)
                zm(ZT+4, 0, last); zm(ZT+8, 1, last); zm(ZT+12, 2, last)
                if tp <= 3: zm(ZT8+4, 4, last)
                ops.append(("free", last))
                zm(ZT+0, 1, x8)
                if tp <= 3: zm(ZT8, 3, x8)
                ops.append(("free", x8))
                z = Z4 + 8*(tp % 4)
                for e in range(2):
                    for rr_ in range(2):
                        r = 2*e + rr_
                        pendv.append(f"v_cvt_pk_bf16_f32 v{z+4*e+2*rr_}, v{ZT+r}, v{ZT+4+r}")
                        pendv.append(f"v_cvt_pk_bf16_f32 v{z+4*e+2*rr_+1}, v{ZT+8+r}, v{ZT+12+r}")
                if tp <= 3:
                    for r in range(4): pendv.append(f"v_cvt_pk_bf16_f32 v{Z8+4*tp+r}, v{ZT8+r}, v{ZT8+4+r}")
            else:
                ops.append(("free", last))
        body_start = len(ops)
        if t <= 7:
            for s in (4, 3, 2):
                if t - s >= 0:
                    for e in range(2): mm(t, Z4 + 8*((t-s) % 4) + 4*e, T3 + 8*(s-2) + 4*e)
            for s in range(4, 8):
                if t - s >= 0: mm(t, Z8 + 4*(t-s), T4 + 4*(s-4))
            if t >= 4:
                fx = rd(480 + 512*(t-4), t-4); mm(t, FIX, None, fx); ops.append(("free", fx))
            for sg in range(16*(t-1)+2, 16*t+1, 2):
                r = rd(480 + 32*sg, t)
                mm(t, Afr(16*t - sg), None, r)
                if t+1 <= 7: mm(t+1, Afr(16*(t+1) - sg), None, r)
                if sg == 16*t:
                    if t+2 <= 7: mm(t+2, Afr(32), None, r)
                    last = r
                else: ops.append(("free", r))
        body = ops[body_start:]; del ops[body_start:]
        nz = 0 if t == 0 else (6 if t-1 <= 3 else 4 if t-1 <= 5 else 0)
        out = []; cnt = 0; ydone = (t == 0); bdone = (t == 0); ypos = max(0, 6 - nz)
        for o in body:
            if not ydone and cnt >= ypos: out.append(("y", t-1)); ydone = True; ycnt = cnt
            if ydone and not bdone and cnt >= ycnt + 3: out.append(("bar", t)); bdone = True
            out.append(o)
            if o[0] == "m":
                cnt += 1
                if cnt >= 6 and pendv: out.append(("v", pendv.pop(0)))
        if not ydone: out.append(("y", t-1))
        if not bdone: out.append(("bar", t))
        assert not pendv
        ops += out
    freel = list(range(NRING)); slot = {}; nxt = 0; q = []
    barseen = 0
    def allowed(stage):
        return stage < 2 or barseen >= 2*(stage//2) - 1
    def issue():
        nonlocal nxt
        while freel and nxt < len(reads) and allowed(reads[nxt][1]):
            s = freel.pop(0); slot[nxt] = s
            a(f"ds_read_b128 {vr(RING+4*s,4)}, v2 offset:{reads[nxt][0]}"); q.append(("r", nxt)); nxt += 1
    def wait_for(item):
        if item in q:
            i = q.index(item); n = len(q) - 1 - i
            a(f"s_waitcnt lgkmcnt({min(n,15)})"); del q[:i+1]
    issue()
    nm = 0
    for o in ops:
        if o[0] == "m":
            rr = None
            if o[2] is not None:
                assert o[2] in slot, "read not issued"
                wait_for(("r", o[2])); rr = RING + 4*slot[o[2]]
            a(o[1](rr)); nm += 1
        elif o[0] == "free":
            freel.append(slot[o[1]]); issue()
        elif o[0] == "v": a(o[1])
        elif o[0] == "y":
            a(f"ds_write_b128 v5, {vr(acc(o[1]),4)} offset:{1280*o[1]}"); q.append(("y", o[1]))
        elif o[0] == "bar":
            wait_for(("y", o[1]-1))
            for l in fstamp(cfg, f"qa{o[1]}"): a(l)
            a("s_barrier")
            for l in fstamp(cfg, f"qb{o[1]}"): a(l)
            barseen = o[1]; issue()
    assert nm == 202, nm

def gen_final_row(a, cfg):
    a(f"""
    s_setprio 0
    v_mov_b32 v8, {L_MISC}
    ds_read_b128 v[12:15], v8
    s_and_b32 s44, s42, 0x70
    s_and_b32 s46, s42, 1
    s_lshl_b32 s46, s46, 3
    s_add_u32 s44, s44, s46
    s_bfe_u32 s46, s42, 0x30001
    s_add_u32 s44, s44, s46
    s_lshl_b32 s44, s44, 4
    s_add_u32 s44, s44, {WS_FP}
    v_min_u32 v9, 55, v1
    v_mul_u32_u24 v9, 1792, v9
    v_add_u32 v9, s44, v9
    global_load_dwordx4 v[16:19], v9, {WS} sc1
    s_lshr_b32 s57, {TAG}, 8
    s_lshr_b32 s58, {TAG}, 16
    s_lshr_b32 s59, {TAG}, 24
    s_waitcnt lgkmcnt(0)
    v_max3_u32 v12, v12, v13, v14
    v_max_u32 v12, v12, v15             ; key
    v_not_b32 v13, v12
    v_and_b32 v13, 0x7ff, v13           ; idx
    v_mul_u32_u24 v10, 896, v13
    s_lshl_b32 s44, s42, 2
    s_add_u32 s44, s44, s45
    s_lshl_b32 s44, s44, 1
    v_add_u32 v10, s44, v10
    global_load_ushort v20, v10, {X}
    s_mul_i32 s44, s45, {XNSZ}
    s_add_u32 s44, s44, 512
    v_lshl_add_u32 v14, v13, 1, s44
    ds_read_u16 v21, v14
    v_lshrrev_b32 v14, 8, v13
    v_mul_u32_u24 v14, 1280, v14
    v_and_b32 v15, 0xf0, v13
    v_add_u32 v14, v14, v15
    v_bfe_u32 v15, v13, 2, 2
    v_mul_u32_u24 v15, 320, v15
    v_add_u32 v14, v14, v15
    v_and_b32 v15, 3, v13
    v_lshl_add_u32 v14, v15, 2, v14
    s_mul_i32 s44, s45, {YCH}
    s_add_u32 s44, s44, {L_Y}
    v_add_u32 v14, s44, v14
    ds_read_b32 v22, v14
    v_ashrrev_i32 v23, 31, v12
    v_not_b32 v23, v23
    v_or_b32 v23, 0x80000000, v23
    v_xor_b32 v23, v23, v12
    v_cvt_pk_bf16_f32 v23, 0, v23
    v_mul_f32 v23, {fhex(-LOG2E)}, v23
    v_exp_f32 v23, v23
    v_add_f32 v23, 1.0, v23
    v_rcp_f32 v23, v23
    v_cvt_pk_bf16_f32 v23, 0, v23
    s_lshl_b32 s44, s45, 4
    s_lshr_b64 s[62:63], s[62:63], s44
    s_lshl_b32 s62, s62, 16             ; Dskip
    s_waitcnt lgkmcnt(0)
    v_lshlrev_b32 v21, 16, v21          ; xn
    v_fma_f32 v22, v21, s62, v22        ; s
    s_mov_b32 s54, 0
    s_branch L_fin_chk
    L_fin_poll:
    global_load_dwordx4 v[16:19], v9, {WS} sc1
    L_fin_chk:
    s_add_u32 s54, s54, 1
    s_waitcnt vmcnt(0)
    v_xor_b32 v24, {TAG}, v16
    v_xor_b32 v25, s57, v17
    v_xor_b32 v26, s58, v18
    v_xor_b32 v27, s59, v19
    v_or3_b32 v24, v24, v25, v26
    v_or_b32 v24, v24, v27
    v_and_b32 v24, 0xff, v24
    v_cmp_ne_u32 vcc, 0, v24
    s_cbranch_vccz L_fin_got
    s_cmp_lt_u32 s54, {POLL_MAX}
    s_cbranch_scc1 L_fin_poll
    L_fin_got:
    s_bitcmp1_b32 s45, 0
    s_cselect_b64 s[48:49], -1, 0
    v_cndmask_b32 v16, v16, v17, s[48:49]
    v_cndmask_b32 v18, v18, v19, s[48:49]
    s_bitcmp1_b32 s45, 1
    s_cselect_b64 s[48:49], -1, 0
    v_cndmask_b32 v16, v16, v18, s[48:49]
    s_mov_b32 s48, -1
    s_mov_b32 s49, 0x00ffffff
    v_cndmask_b32 v16, 0, v16, s[48:49]
    """)
    stamp(a, cfg, 6)
    dpp_reduce64(a, "v_add_f32", [16])
    a(f"""
    v_cvt_pk_bf16_f32 v16, 0, v16
    v_mul_f32 v16, v16, v23
    v_cvt_pk_bf16_f32 v16, 0, v16
    v_add_f32 v16, v16, v21
    v_cvt_pk_bf16_f32 v16, 0, v16       ; z
    v_mul_f32 v17, {fhex(-LOG2E)}, v16
    v_exp_f32 v17, v17
    v_lshlrev_b32 v20, 16, v20
    v_add_f32 v17, 1.0, v17
    v_rcp_f32 v17, v17
    v_mul_f32 v16, v16, v22
    v_fma_f32 v16, v16, v17, v20
    v_cvt_pk_bf16_f32 v16, v16, v16
    s_mov_b32 exec_lo, 0
    s_mov_b32 exec_hi, 0x80000000
    global_store_short v10, v16, {OUT}
    s_mov_b64 exec, -1
    """)
    stamp(a, cfg, 7)
    a("s_branch L_exit")

def gen_helper(a, cfg, ACC, DT):
    ROLE[0] = "hp"
    XF = 64
    Q = 96
    G = 128
    Y = 136
    TM = 144
    a("L_helper:")
    for k in range(12): a(f"v_mul_f32 v{ACC+k}, v{ACC+k}, v{DT}")
    for k in range(3): a(f"ds_write_b128 v20, {vr(ACC+4*k,4)} offset:{1024*k}")
    a(f"""
    s_lshl_b32 s44, s45, 8
    s_mov_b32 m0, s44
    s_lshl_b32 s56, s62, 16
    s_and_b32 s57, s62, 0xffff0000
    s_lshl_b32 s58, s63, 16
    s_and_b32 s59, s63, 0xffff0000
    s_mov_b32 s60, {fhex(-LOG2E)}
    s_waitcnt lgkmcnt(0)
    s_barrier
    """)
    stamp(a, cfg, 2)
    a(f"""
    v_mov_b32 v22, 0
    v_mov_b32 v23, 0
    s_mul_i32 s44, s45, {XNSZ}
    v_lshl_add_u32 v21, v1, 3, s44
    ds_write_b64 v21, v[22:23]
    s_and_b32 s44, s45, 1
    s_lshl_b32 s44, s44, 6
    v_add_u32 v24, s44, v1
    v_lshrrev_b32 v25, 3, v24
    v_lshlrev_b32 v25, 4, v25
    v_bfe_u32 v26, v24, 1, 2
    v_mul_u32_u24 v26, 320, v26
    v_and_b32 v27, 1, v24
    v_lshlrev_b32 v27, 3, v27
    v_add3_u32 v25, v25, v26, v27
    s_lshr_b32 s44, s45, 1
    s_mul_i32 s44, s44, 1280
    s_add_u32 s44, s44, {L_Y}
    v_add_u32 v5, s44, v25
    s_waitcnt vmcnt(4)
    """)
    for i in range(4):
        for row in range(2):
            for p in range(2):
                s = XRAW + 4*i + 2*row + p; d = XF + 8*i + 4*row + 2*p
                a(f"v_lshlrev_b32 v{d}, 16, v{s}\nv_and_b32 v{d+1}, s43, v{s}")
    a("s_mov_b32 s54, 0\ns_branch L_h_chk\nL_h_poll:")
    stats_loads(a)
    a(f"""
    L_h_chk:
    s_add_u32 s54, s54, 1
    s_waitcnt vmcnt(0)
    """)
    for i in range(4):
        g = GR + 4*i
        a(f"v_xor_b32 v{TM+2*i}, v{g}, v{g+1}\nv_xor_b32 v{TM+2*i+1}, v{g+2}, v{g+3}")
    for i in range(4): a(f"v_xor_b32 v{TM+2*i}, v{TM+2*i}, v{TM+2*i+1}")
    for i in range(4): a(f"v_xor_b32 v{TM+2*i}, {TAG}, v{TM+2*i}")
    a(f"""
    v_or3_b32 v{TM}, v{TM}, v{TM+2}, v{TM+4}
    v_or_b32 v{TM}, v{TM}, v{TM+6}
    v_cmp_ne_u32 vcc, 0, v{TM}
    s_cbranch_vccz L_h_got
    s_cmp_lt_u32 s54, {POLL_MAX}
    s_cbranch_scc1 L_h_poll
    L_h_got:
    """)
    stamp(a, cfg, 3)
    def norm(i):
        g = GR + 4*i; t = TM
        a(f"""
        v_and_b32 v{t+2}, s43, v{g}
        v_and_b32 v{t+3}, s43, v{g+1}
        v_lshlrev_b32 v{t}, 16, v{g}
        v_lshlrev_b32 v{t+1}, 16, v{g+1}
        v_rcp_f32 v{t+2}, v{t+2}
        v_rcp_f32 v{t+3}, v{t+3}
        """)
        for k in range(8): a(f"v_sub_f32 v{Q+8*i+k}, v{XF+8*i+k}, v{t+k//4}")
        for k in range(8): a(f"v_cvt_pk_bf16_f32 v{Q+8*i+k}, 0, v{Q+8*i+k}")
        for c in range(4):
            a(f"v_mul_f32 v{Q+8*i+c}, v{Q+8*i+c}, v{t+2}\nv_mul_f32 v{Q+8*i+4+c}, v{Q+8*i+4+c}, v{t+3}")
            a(f"v_cvt_pk_bf16_f32 v{t+4+c}, v{Q+8*i+c}, v{Q+8*i+4+c}")
            a(f"ds_write_addtid_b32 v{t+4+c} offset:{c*XNSZ + 512 + 1024*i}")
    def gate(i):
        for k in range(8): a(f"v_mul_f32 v{G+k}, s60, v{Q+8*i+k}")
        for k in range(8): a(f"v_exp_f32 v{G+k}, v{G+k}")
        for k in range(8): a(f"v_add_f32 v{G+k}, 1.0, v{G+k}")
        for k in range(8): a(f"v_rcp_f32 v{G+k}, v{G+k}")
        for k in range(8): a(f"v_mul_f32 v{G+k}, v{G+k}, v{Q+8*i+k}")
    def epi(i):
        for c in range(4): a(f"ds_read_b64 {vr(Y+2*c,2)}, v5 offset:{c*YCH + 2560*i}")
        a(f"""
        v_add_u32 v{TM+8}, {512*i}, v254
        v_cmp_ne_u32 s[46:47], s61, v{TM+8}
        v_add_u32 v{TM+8}, 1, v{TM+8}
        v_cmp_ne_u32 s[48:49], s61, v{TM+8}
        """)
        for c in range(4):
            a(f"s_waitcnt lgkmcnt({3-c})")
            for row in range(2):
                k = 4*row + c
                a(f"v_fma_f32 v{Y+2*c+row}, v{Q+8*i+k}, s{56+c}, v{Y+2*c+row}")
            for row in range(2):
                k = 4*row + c
                a(f"v_fma_f32 v{Y+2*c+row}, v{Y+2*c+row}, v{G+k}, v{XF+8*i+k}")
        o = TM + 10 + 4*(i & 1)
        for row in range(2):
            for p in range(2): a(f"v_cvt_pk_bf16_f32 v{o+2*row+p}, v{Y+4*p+row}, v{Y+4*p+2+row}")
        a(f"""
        s_mov_b64 exec, s[46:47]
        global_store_dwordx2 v{VCOL+i}, {vr(o,2)}, {OUT} {cfg.outbits}
        s_mov_b64 exec, s[48:49]
        global_store_dwordx2 v{VCOL+i}, {vr(o+2,2)}, {OUT} offset:896 {cfg.outbits}
        s_mov_b64 exec, -1
        """)
    bar = "s_waitcnt lgkmcnt(0)\ns_barrier"
    norm(0); a(bar)
    stamp(a, cfg, 4)
    norm(1)
    a(f"v_max3_u32 v{TM+8}, v{GR+2}, v{GR+6}, v{GR+10}\nv_max_u32 v{TM+8}, v{TM+8}, v{GR+14}")
    dpp_reduce64(a, "v_max_u32", [TM+8])
    a(f"""
    s_lshl_b32 s44, s45, 2
    s_add_u32 s44, s44, {L_MISC}
    v_mov_b32 v{TM+9}, s44
    s_mov_b32 exec_lo, 0
    s_mov_b32 exec_hi, 0x80000000
    ds_write_b32 v{TM+9}, v{TM+8}
    s_mov_b64 exec, -1
    v_mov_b32 v{TM+9}, {L_MISC}
    """)
    a(bar)
    a(f"ds_read_b128 {vr(Y,4)}, v{TM+9}")
    gate(0)
    a(f"""
    s_waitcnt lgkmcnt(0)
    v_max3_u32 v{Y}, v{Y}, v{Y+1}, v{Y+2}
    v_max_u32 v{Y}, v{Y}, v{Y+3}
    v_readfirstlane_b32 s61, v{Y}
    s_andn2_b32 s61, 0x7ff, s61         ; idx
    """)
    a("s_barrier")
    epi(0); norm(2); a(bar)
    gate(1); a("s_barrier")
    epi(1); norm(3); a(bar)
    gate(2); a("s_barrier")
    epi(2); gate(3); a("s_barrier")
    a("s_cmp_lt_u32 s45, 2\ns_cbranch_scc1 L_h_last\ns_barrier\nL_h_last:")
    stamp(a, cfg, 5)
    epi(3)
    a("s_cmp_lt_u32 s45, 2\ns_cbranch_scc0 L_h_end\ns_barrier\nL_h_end:")
    stamp(a, cfg, 6)
    if cfg.stamps or cfg.diag == "hp7": a("s_waitcnt vmcnt(0)")
    stamp(a, cfg, 7)
    if cfg.dump == "xy":
        a("s_mov_b32 s46, 0")
        a(f"s_cmp_lg_u32 {WID}, 7\ns_cbranch_scc1 L_exit")
        dump_lds(a, "s46", 4*XNSZ + 4*YCH, "xy", perwave=False)

def dump_lds(a, sbase, nbytes, lab, perwave=True):
    a(f"""
    s_lshl_b32 s44, s42, 2
    {'s_add_u32 s44, s44, s45' if perwave else ''}
    s_lshl_b32 s44, s44, 16
    s_add_u32 s44, s44, {WS_DUMP}
    v_lshlrev_b32 v228, 2, v1
    v_add_u32 v229, s44, v228
    v_add_u32 v228, {sbase}, v228
    s_mov_b32 s44, 0
    L_dump_{lab}:
    ds_read_b32 v230, v228
    s_waitcnt lgkmcnt(0)
    global_store_dword v229, v230, {WS}
    v_add_u32 v228, 256, v228
    v_add_u32 v229, 256, v229
    s_add_u32 s44, s44, 256
    s_cmp_lt_u32 s44, {nbytes}
    s_cbranch_scc1 L_dump_{lab}
    s_waitcnt vmcnt(0)
    """)

def gen_exit(a, cfg):
    a("L_exit:")
    if cfg.diag:
        a("""
        s_waitcnt lgkmcnt(0)
        s_cmp_eq_u32 s64, 0
        s_cbranch_scc1 L_diag_done
        L_diag_spin:
        s_sleep 2
        s_memrealtime s[66:67]
        s_waitcnt lgkmcnt(0)
        s_sub_u32 s66, s66, s64
        s_cmp_lt_u32 s66, 3000
        s_cbranch_scc1 L_diag_spin
        L_diag_done:
        """)
    if cfg.stamps:
        a("s_waitcnt lgkmcnt(0)")
        for k in range(8): a(f"v_mov_b32 v{8+k}, s{64+2*k}")
        a(f"""
        s_lshl_b32 s44, s2, 3
        s_add_u32 s44, s44, {WID}
        s_lshl_b32 s44, s44, 5
        s_add_u32 s44, s44, 0x80000
        v_mov_b32 v2, s44
        s_mov_b64 exec, 1
        global_store_dwordx4 v2, v[8:11], {WS}
        global_store_dwordx4 v2, v[12:15], {WS} offset:16
        """)
    a("s_endpgm")

def generate(cfg):
    a = Asm()
    if cfg.diag: a("s_mov_b64 s[64:65], 0")
    if cfg.stamps:
        for k in range(1, 8): a(f"s_mov_b64 s[{64+2*k}:{65+2*k}], 0")
    gen_entry(a, cfg)
    gen_ln(a, cfg)
    gen_ffn(a, cfg)
    gen_conv(a, cfg)
    gen_exit(a, cfg)
    a("L_code_end:")
    gen_janitor(a, cfg)
    body = a.finish()
    hdr = open(f"cdna_kernels/{NAME}.s.ref").read().split("; Override launch")[0]
    s = hdr + f"; @launch grid=(256,1,1) block=(512,1,1) lds={LDS_SIZE}\n"
    s += f""".amdgcn_target "amdgcn-amd-amdhsa--gfx950"
.text
.globl {KN}
.p2align 8
.type {KN},@function
{KN}:
""" + body + f""".section .rodata,"a"
.p2align 6
.amdhsa_kernel {KN}
  .amdhsa_next_free_vgpr 256
  .amdhsa_next_free_sgpr 96
  .amdhsa_accum_offset 256
  .amdhsa_group_segment_fixed_size 0
  .amdhsa_kernarg_size 136
  .amdhsa_user_sgpr_count 2
  .amdhsa_user_sgpr_kernarg_segment_ptr 1
  .amdhsa_system_sgpr_workgroup_id_x 1
.end_amdhsa_kernel
"""
    return s

if __name__ == "__main__":
    kw = {}
    out = f"cdna_kernels/{NAME}.s"
    for arg in sys.argv[1:]:
        k, v = arg.split("=")
        if k == "out": out = v
        else: kw[k] = {"True": True, "False": False, "None": None}.get(v, int(v) if v.lstrip("-").isdigit() else v)
    open(out, "w").write(generate(Cfg(**kw)))
    print("wrote", out)
```
